```python
import torch

def _softmax(x, axis=-1):
    return torch.softmax(x, dim=axis)
def _gelu(x):
    return torch.nn.functional.gelu(x, approximate="tanh")
def _silu(x):
    return torch.nn.functional.silu(x)
def _sigmoid(x):
    return torch.sigmoid(x)
def _layernorm(x, axis=-1, eps=1e-5):
    m = x.mean(dim=axis, keepdim=True)
    v = x.var(dim=axis, keepdim=True, unbiased=False)
    return (x - m) / torch.sqrt(v + eps)
def _scatter_add(tgt, idx, src, axis=0):
    return tgt.clone().index_add_(axis, idx, src)
def _segment_sum(src, seg, n):
    out = torch.zeros((n,) + src.shape[1:], dtype=src.dtype)
    return out.index_add_(0, seg, src)
def _pad(x, pw):
    flat = tuple(v for pair in reversed(pw) for v in pair)
    return torch.nn.functional.pad(x, flat)

kernel_name = 'recurrent_scan__mha_block__glu_gated_geglu__prompt'

def setup_inputs():

    _w = (lambda a: (lambda t: t.to(torch.bfloat16) if t.is_floating_point() else t)(torch.as_tensor(a)))
    def _A_setup():
        B, S, D, H = 1, 2048, 640, 32
        return {
            "x": _w((lambda *s: torch.randn(*s, dtype=torch.bfloat16) * 0.05)(B, S, D)),
            "wqkv": _w((lambda *s: torch.randn(*s, dtype=torch.bfloat16) * 0.2)(D, 3 * D)),
            "wo": _w((lambda *s: torch.randn(*s, dtype=torch.bfloat16) * 0.2)(D, D)),
        }
    _A_in = _A_setup()

    def _B_setup():
        B, S, Dm, Df = 1, 2048, 640, 1728
        return {
            "x": _w((lambda *s: torch.randn(*s, dtype=torch.bfloat16) * 0.05)(B, S, Dm)),
            "w_gate": _w((lambda *s: torch.randn(*s, dtype=torch.bfloat16) * 0.1)(Dm, Df) * (Dm ** -0.5)),
            "w_up": _w((lambda *s: torch.randn(*s, dtype=torch.bfloat16) * 0.1)(Dm, Df) * (Dm ** -0.5)),
            "w_down": _w((lambda *s: torch.randn(*s, dtype=torch.bfloat16) * 0.1)(Df, Dm) * (Df ** -0.5)),
        }
    _B_in = _B_setup()

    return {
        "A_x": _A_in["x"],
        "A_wqkv": _A_in["wqkv"],
        "A_wo": _A_in["wo"],
        "B_x": _B_in["x"],
        "B_w_gate": _B_in["w_gate"],
        "B_w_up": _B_in["w_up"],
        "B_w_down": _B_in["w_down"],
    }

def reference(A_x, A_wqkv, A_wo, B_x, B_w_gate, B_w_up, B_w_down):
    def _A_ref(x, wqkv, wo):
        B, S, D = x.shape
        H = 32
        Dh = D // H
        qkv = (lambda x, *d: x.permute(*d))((x @ wqkv).reshape(B, S, 3, H, Dh), 2, 0, 3, 1, 4)
        q, k, v = qkv[0], qkv[1], qkv[2]
        scores = torch.einsum("bhqd,bhkd->bhqk", q, k) * (Dh ** -0.5)
        p = _softmax(scores, axis=-1)
        o = torch.einsum("bhqk,bhkd->bhqd", p, v)
        return (lambda x, *d: x.permute(*d))(o, 0, 2, 1, 3).reshape(B, S, D) @ wo

    def _B_ref(x, w_gate, w_up, w_down):
        g = torch.einsum("bsd,df->bsf", x, w_gate)
        u = torch.einsum("bsd,df->bsf", x, w_up)
        h = _gelu(g) * u
        return torch.einsum("bsf,fd->bsd", h, w_down)

    x = A_x
    xn = _layernorm(x, axis=-1)
    s = _A_ref(xn, A_wqkv, A_wo)
    g = _silu(_B_ref(xn, B_w_gate, B_w_up, B_w_down))
    return x + s * g
```

```python
import re

def v(n, c=1):
    return f"v{n}" if c == 1 else f"v[{n}:{n+c-1}]"
def s(n, c=1):
    return f"s{n}" if c == 1 else f"s[{n}:{n+c-1}]"

class Asm:
    def __init__(self):
        self.lines = []
        self.uid = 0
    def __call__(self, text):
        for ln in text.split("\n"):
            ln = ln.strip()
            if ln:
                self.lines.append(ln if ln.endswith(":") or ln.startswith(".") or ln.startswith(";") else "    " + ln)
    def c(self, text):
        self.lines.append("    ; " + text)
    def label(self, name):
        self.lines.append(name + ":")
    def newlabel(self, base):
        self.uid += 1
        return f"L_{base}_{self.uid}"
    def nop(self, n):
        while n > 0:
            k = min(n, 16)
            self(f"s_nop {k-1}")
            n -= k
    def text(self):
        return "\n".join(self.lines) + "\n"

_reg_re = re.compile(r"^(v|s|a)(\d+)$|^(v|s|a)\[(\d+):(\d+)\]$")
def parse_reg(tok):
    tok = tok.strip()
    neg = tok.startswith("-")
    if neg: tok = tok[1:]
    if tok.startswith("abs(") or tok.startswith("|"):
        tok = tok.replace("abs(", "").replace(")", "").replace("|", "")
    m = _reg_re.match(tok)
    if m:
        if m.group(1):
            return [(m.group(1), int(m.group(2)))]
        return [(m.group(3), i) for i in range(int(m.group(4)), int(m.group(5)) + 1)]
    if tok == "vcc": return [("s", 106), ("s", 107)]
    if tok == "exec": return [("s", 126), ("s", 127)]
    if tok == "m0": return [("s", 124)]
    if tok == "scc": return []
    return []

TRANS = ("v_exp_f32", "v_log_f32", "v_rcp_f32", "v_rsq_f32", "v_sqrt_f32", "v_sin_f32", "v_cos_f32", "v_exp_f16", "v_rcp_iflag_f32")

class Ins:
    def __init__(self, text, idx):
        self.text = text; self.idx = idx
        t = text.split(";")[0].strip()
        parts = t.split(None, 1)
        self.op = parts[0]
        rest = parts[1] if len(parts) > 1 else ""
        toks = [x.strip() for x in rest.split(",")] if rest else []
        mods = ""
        if toks:
            last = toks[-1].split()
            toks[-1] = last[0] if last else ""
            mods = " ".join(last[1:])
        self.toks = toks; self.mods = mods
        op = self.op
        self.dst = []; self.src = []
        self.kind = "other"
        R = lambda i: parse_reg(toks[i]) if i < len(toks) else []
        if op.startswith("v_mfma"):
            self.kind = "mfma"
            self.dst = R(0); self.A = R(1); self.B = R(2); self.C = R(3)
            self.src = self.A + self.B + self.C
            self.passes = 8 if "32x32" in op else 4
        elif op.startswith("buffer_load") or op.startswith("global_load"):
            if " lds" in (" " + mods) or "_lds_" in op:
                self.kind = "dma"
                for i in range(len(toks)): self.src += R(i)
                self.src += [("s", 124)]
            else:
                self.kind = "vload"
                self.dst = R(0)
                for i in range(1, len(toks)): self.src += R(i)
        elif op.startswith("buffer_store") or op.startswith("global_store") or op.startswith("buffer_atomic") or op.startswith("global_atomic"):
            self.kind = "vstore"
            for i in range(len(toks)): self.src += R(i)
            self.data = R(0) if op.startswith("buffer") else R(1)
            if "sc0" in mods and "atomic" in op: self.dst = R(0)
        elif op.startswith("buffer_") :
            self.kind = "vmisc"
        elif op.startswith("ds_read") or op.startswith("ds_bpermute") or op.startswith("ds_swizzle") or op.startswith("ds_permute"):
            self.kind = "dsread"
            self.dst = R(0)
            for i in range(1, len(toks)): self.src += R(i)
        elif op.startswith("ds_"):
            self.kind = "dswrite"
            for i in range(len(toks)): self.src += R(i)
        elif op.startswith("s_load") or op.startswith("s_buffer_load") or op.startswith("s_memtime") or op.startswith("s_memrealtime"):
            self.kind = "smem"
            self.dst = R(0)
            for i in range(1, len(toks)): self.src += R(i)
        elif op.startswith("v_"):
            self.kind = "valu"
            if op.startswith("v_cmp"):
                self.dst = R(0)
                for i in range(1, len(toks)): self.src += R(i)
                if op.startswith("v_cmpx"): self.dst += parse_reg("exec")
            elif op.startswith("v_permlane") and "swap" in op:
                self.dst = R(0) + R(1); self.src = R(0) + R(1)
            elif op.startswith(("v_add_co", "v_sub_co", "v_addc_co", "v_subb_co", "v_subrev_co", "v_mad_u64_u32", "v_div_scale")):
                self.dst = R(0) + R(1)
                for i in range(2, len(toks)): self.src += R(i)
            else:
                self.dst = R(0)
                for i in range(1, len(toks)): self.src += R(i)
                if op.startswith(("v_fmac", "v_dot2c", "v_pk_fmac", "v_writelane", "v_mac")): self.src += R(0)
                if op.startswith("v_cndmask") and len(toks) == 3: self.src += parse_reg("vcc")
                if "dpp" in mods or "row_" in mods or "quad_perm" in mods: self.dpp = True
            self.trans = op.replace("_e32", "").replace("_e64", "") in TRANS
        elif op.startswith("s_"):
            self.kind = "salu"
            if op in ("s_nop", "s_waitcnt", "s_barrier", "s_endpgm", "s_setprio", "s_sleep", "s_branch") or op.startswith("s_cbranch"):
                self.kind = "sctl"
            elif op.startswith("s_cmp") or op.startswith("s_bitcmp"):
                for i in range(len(toks)): self.src += R(i)
            else:
                self.dst = R(0)
                for i in range(1, len(toks)): self.src += R(i)
                if "saveexec" in op: self.dst += parse_reg("exec"); self.src += parse_reg("exec")
        self.ws = 1
        if op == "s_nop": self.ws = int(toks[0], 0) + 1

def check(lines, name=""):
    ins = []
    for i, ln in enumerate(lines):
        t = ln.strip()
        if not t or t.startswith(";") or t.startswith(".") or t.endswith(":"):
            continue
        ins.append(Ins(t, i))
    probs = []
    def dist(a, b):
        return sum(ins[k].ws for k in range(a + 1, b))
    W = 24
    for b, I in enumerate(ins):
        srcs = set(I.src); dsts = set(I.dst)
        d = 0
        for a in range(b - 1, max(-1, b - 1 - W), -1):
            P = ins[a]
            need = 0; why = ""
            pd = set(P.dst)
            def upd(n, w):
                nonlocal need, why
                if n > need: need, why = n, w
            if P.kind == "valu":
                vd = {r for r in pd if r[0] in "va"}
                sd = {r for r in pd if r[0] == "s"}
                if I.kind == "mfma" and vd & srcs: upd(2, "valu->mfma src")
                if I.kind == "mfma" and ("s", 126) in sd: upd(4, "valu exec->mfma")
                if I.kind == "valu":
                    if getattr(P, "trans", False) and not getattr(I, "trans", False) and vd & srcs: upd(1, "trans->valu")
                    if I.op.startswith(("v_readfirstlane", "v_readlane")) and vd & srcs: upd(1, "valu->readlane")
                    if I.op.startswith("v_permlane") and vd & srcs: upd(2, "valu->permlane")
                    if getattr(I, "dpp", False) and vd & srcs: upd(2, "valu->dpp")
                    if sd & srcs and not I.op.startswith(("v_addc", "v_subb")): upd(2, "valu sgpr->valu read")
                    if sd & srcs and I.op.startswith(("v_addc", "v_subb")): upd(2, "valu vcc->carry (llvm 2)")
                    if I.op.startswith(("v_readlane", "v_writelane")) and sd & srcs: upd(4, "valu sgpr->lane sel")
                if I.kind in ("vload", "vstore", "dma") and sd & srcs: upd(5, "valu sgpr->vmem")
                if I.kind in ("salu",) and sd & srcs: upd(1, "valu sgpr->salu (defensive)")
            if P.kind == "mfma":
                n = P.passes
                if I.kind == "mfma":
                    Cs = set(I.C)
                    if pd & Cs:
                        if pd == Cs and I.passes == n: pass
                        else: upd({4: 6, 8: 10}[n], "mfma D->overlap C")
                    if pd & (set(I.A) | set(I.B)): upd({4: 8, 8: 12}[n], "mfma D->A/B")
                    if pd & set(I.dst) and not (pd == set(I.dst)): upd({4: 6, 8: 10}[n], "mfma D partial WAW")
                elif I.kind in ("valu", "vload", "vstore", "dsread", "dswrite", "dma"):
                    if pd & (srcs | dsts): upd({4: 8, 8: 12}[n], "mfma D->valu/mem")
                if I.kind == "valu" and set(P.C) & dsts: upd({4: 3, 8: 7}[n], "mfma C WAR")
            if P.kind == "vstore" and ("x4" in P.op or "x3" in P.op):
                if I.kind == "valu" and set(P.data) & dsts: upd(2, "store data WAR")
                elif set(P.data) & dsts: upd(1, "store data WAR (any)")
            if P.kind == "salu" and ("s", 124) in pd and I.kind == "dma": upd(1, "m0->dma")
            if need > d:
                probs.append(f"{name} line {I.idx}: '{I.text}' needs {need} ws after '{P.text}' ({why}), has {d}")
            d += P.ws
            if d > 20: break
    vm = []
    lg = []
    for I in ins:
        touched = set(I.src) | set(I.dst)
        if I.op == "s_endpgm":
            vm = []; lg = []
            continue
        if I.op == "s_waitcnt":
            txt = I.text
            m = re.search(r"vmcnt\((\d+)\)", txt)
            if m:
                n = int(m.group(1))
                while len(vm) > n: vm.pop(0)
            m = re.search(r"lgkmcnt\((\d+)\)", txt)
            if m:
                n = int(m.group(1))
                if any(k == "smem" for k, _ in lg) and n > 0:
                    pass
                else:
                    while len(lg) > n: lg.pop(0)
                if n == 0: lg = []
            continue
        for (txt, regs) in vm:
            if regs & touched:
                probs.append(f"{name} line {I.idx}: '{I.text}' touches regs of pending vmem '{txt}'")
        for (k, regs) in lg:
            if regs & touched:
                probs.append(f"{name} line {I.idx}: '{I.text}' touches regs of pending lgkm op")
        if I.kind in ("vload", "vstore", "dma", "vmisc"):
            vm.append((I.text, set(I.dst)))
            if len(vm) > 63: probs.append(f"{name} line {I.idx}: vmcnt overflow (>63 outstanding)")
        elif I.kind in ("dsread", "dswrite"):
            lg.append(("ds", set(I.dst)))
        elif I.kind == "smem":
            lg.append(("smem", set(I.dst)))
    return probs
```

```python
WS_Q  = 0x000000
WS_K  = 0x300000
WS_V  = 0x580000
WS_H  = 0x800000
WS_O  = 0xF00000
WS_WO = 0x1200000
WS_WD = 0x1300000
WS_G  = 0x1600000
WS_SIZE = 0x10000000
X_BYTES = 2048*640*2
WQKV_BYTES = 640*1920*2
WO_BYTES = 640*640*2
WG_BYTES = 640*1728*2
WD_BYTES = 1728*640*2
OUT_BYTES = 2048*640*2
LOG2E = 1.4426950408889634
QSCALE = (20.0 ** -0.5) * LOG2E
import struct
def f2u(x):
    return struct.unpack("<I", struct.pack("<f", x))[0]
def fhex(x):
    return "0x%08x" % f2u(x)

def kd(name, vgpr, sgpr=96):
    acc = (vgpr + 3) // 4 * 4
    return f""".p2align 6
.amdhsa_kernel {name}
  .amdhsa_next_free_vgpr {vgpr}
  .amdhsa_next_free_sgpr {sgpr}
  .amdhsa_accum_offset {acc}
  .amdhsa_group_segment_fixed_size 0
  .amdhsa_kernarg_size 80
  .amdhsa_user_sgpr_count 2
  .amdhsa_user_sgpr_kernarg_segment_ptr 1
  .amdhsa_system_sgpr_workgroup_id_x 1
.end_amdhsa_kernel
"""
def header(a, name):
    a(f".globl {name}")
    a(f".p2align 8")
    a(f".type {name},@function")
    a.label(name)
```

```python
from asmlib import *
from common import *

A_RING = 0
B_RING = 98304
B_SLOT = 12288

S_X, S_B, S_WS = 4, 8, 12
S_W, S_WM, S_WN, S_MB, S_NB = 32, 33, 34, 35, 36
S_T = 37
S_BW = 38
S_BOFF = 39
S_BM0 = 40
S_AW = 41
S_AOFF = 42
S_AT = 43
S_AM0 = 44
S_ONES = 45
S_TMP = 46
S_TMP2 = 47
S_AR = 48
S_BROW = 49
S_H4 = 50
S_SEC = 51
S_E0, S_E1, S_E2, S_E3 = 52, 53, 54, 55

V_ACC = 16
V_X = [112, 128]
V_WF = [144, 168]
V_AB = [192, 193]
V_AC = 194
V_BB = [195, 196]
V_BC = [197, 198]
V_DM = [199, 200, 201]
V_XS1 = 202
V_XS2 = 206
V_CS = 210
V_LANE = 216
V_T0 = 217
NVGPR = 224

def acc(f, j, NT):
    return V_ACC + (f * NT + j) * 4

def main_loop(a, NT, RS, upoff, nm):
    def reads(setn, vA, vB):
        r = []
        for f in range(4):
            r.append(f"ds_read_b128 {v(V_X[setn]+4*f,4)}, {v(vA)} offset:{f*2048}")
        for j in range(NT):
            base, jo = upoff[j]
            vb = vB[jo & 1]
            off = base + 32 * jo
            r.append(f"ds_read_b64_tr_b16 {v(V_WF[setn]+4*j,2)}, {v(vb)} offset:{off}")
            r.append(f"ds_read_b64_tr_b16 {v(V_WF[setn]+4*j+2,2)}, {v(vb)} offset:{off + 4*RS}")
        return r
    def mfmas(setn):
        r = []
        for j in range(NT):
            for f in range(4):
                d = v(acc(f, j, NT), 4)
                r.append(f"v_mfma_f32_16x16x32_bf16 {d}, {v(V_WF[setn]+4*j,4)}, {v(V_X[setn]+4*f,4)}, {d}")
        return r
    def xstats(setn):
        for reg in range(4):
            for f in range(4):
                x = v(V_X[setn] + 4*f + reg)
                a(f"v_dot2c_f32_bf16 {v(V_XS2+f)}, {x}, {x}")
                a(f"v_dot2c_f32_bf16 {v(V_XS1+f)}, {s(S_ONES)}, {x}")
    def cstats(setn):
        for reg in range(4):
            for j in range(NT):
                a(f"v_dot2c_f32_bf16 {v(V_CS+j)}, {s(S_ONES)}, {v(V_WF[setn]+4*j+reg)}")
    def dma_B():
        a(f"s_add_u32 {s(S_TMP)}, {s(S_BM0)}, {s(S_BW)}")
        for i in range(3):
            a(f"s_add_u32 m0, {s(S_TMP)}, {i*1024}")
            a("s_nop 0")
            a(f"buffer_load_dwordx4 {v(V_DM[i])}, {s(S_B,4)}, {s(S_BOFF)} offen lds")
        a(f"s_add_u32 {s(S_BOFF)}, {s(S_BOFF)}, {s(S_BROW)}")
    def dma_A(hf):
        a(f"s_add_u32 {s(S_TMP)}, {s(S_AM0)}, {s(S_AW)}")
        a(f"s_add_u32 {s(S_TMP2)}, {s(S_AOFF)}, {s(S_AT)}")
        for i in range(4):
            a(f"s_add_u32 m0, {s(S_TMP)}, {hf*16384 + i*1024}")
            a(f"s_add_u32 {s(S_E0)}, {s(S_TMP2)}, {(hf*128 + 8*i)*1280}")
            a(f"buffer_load_dwordx4 {v(V_DM[i&1])}, {s(S_X,4)}, {s(S_E0)} offen lds")
    def advance_A_write():
        a(f"s_add_u32 {s(S_AT)}, {s(S_AT)}, 128")
        a(f"s_cmp_ge_u32 {s(S_AT)}, 1280")
        a(f"s_cselect_b32 {s(S_AT)}, 0x40000000, {s(S_AT)}")
        a(f"s_add_u32 {s(S_AW)}, {s(S_AW)}, 32768")
        a(f"s_cmp_eq_u32 {s(S_AW)}, 98304")
        a(f"s_cselect_b32 {s(S_AW)}, 0, {s(S_AW)}")
    def next_B_slot():
        a(f"s_add_u32 {s(S_BW)}, {s(S_BW)}, {B_SLOT}")
        a(f"s_cmp_eq_u32 {s(S_BW)}, {5*B_SLOT}")
        a(f"s_cselect_b32 {s(S_BW)}, 0, {s(S_BW)}")

    L = f"L_{nm}"
    lb = a.newlabel("pB"); lj = a.newlabel("pJ")
    a(f"s_cmp_eq_u32 {s(S_WN)}, 0")
    a(f"s_cbranch_scc1 {lb}")
    a(f"s_mov_b32 {s(S_AW)}, 0")
    a(f"s_mov_b32 {s(S_AT)}, 0")
    dma_A(0); dma_A(1); advance_A_write()
    dma_A(0); dma_A(1); advance_A_write()
    dma_A(0)
    a("s_waitcnt vmcnt(12)")
    a(f"s_branch {lj}")
    a.label(lb)
    a(f"s_mov_b32 {s(S_BW)}, 0")
    for k in range(5):
        dma_B(); next_B_slot()
    a("s_waitcnt vmcnt(12)")
    a.label(lj)
    a(f"s_mov_b32 {s(S_BW)}, 0")
    a("s_barrier")
    for ln in reads(0, V_AB[0], V_BB): a(ln)
    a(f"s_mov_b32 {s(S_AR)}, 0")
    a(f"s_mov_b32 {s(S_T)}, 0")
    a(f"s_mov_b32 {s(S_H4)}, 0")
    a.label(L + "_loop")
    for ks in range(2):
        cur, nxt = ks, ks ^ 1
        lb = a.newlabel("dB"); lj = a.newlabel("dJ")
        a(f"s_cmp_eq_u32 {s(S_WN)}, 0")
        a(f"s_cbranch_scc1 {lb}")
        if ks == 1:
            a("s_waitcnt vmcnt(8) lgkmcnt(0)")
        else:
            a("s_waitcnt lgkmcnt(0)")
        a("s_barrier")
        if ks == 0:
            dma_A(1); advance_A_write()
        else:
            dma_A(0)
        a(f"s_branch {lj}")
        a.label(lb)
        a("s_waitcnt vmcnt(9) lgkmcnt(0)")
        a("s_barrier")
        dma_B()
        a.label(lj)
        next_B_slot()
        if ks == 1:
            a(f"s_add_u32 {s(S_AR)}, {s(S_AR)}, 32768")
            a(f"s_cmp_eq_u32 {s(S_AR)}, 98304")
            a(f"s_cselect_b32 {s(S_AR)}, 0, {s(S_AR)}")
        a(f"v_add_u32 {v(V_AC)}, {s(S_AR)}, {v(V_AB[nxt])}")
        a(f"v_add_u32 {v(V_BC[0])}, {s(S_BW)}, {v(V_BB[0])}")
        a(f"v_add_u32 {v(V_BC[1])}, {s(S_BW)}, {v(V_BB[1])}")
        rd = reads(nxt, V_AC, V_BC)
        mf = mfmas(cur)
        k = 0
        for i, m in enumerate(mf):
            a(m)
            if k < len(rd):
                a(rd[k]); k += 1
        assert k == len(rd)
        ls = a.newlabel("xs")
        a(f"s_cmp_lg_u32 {s(S_WN)}, {ks}")
        a(f"s_cbranch_scc1 {ls}")
        xstats(cur)
        a.label(ls)
        lc = a.newlabel("cs")
        a(f"s_cmp_lg_u32 {s(S_H4)}, {s(S_WM)}")
        a(f"s_cbranch_scc1 {lc}")
        cstats(cur)
        a.label(lc)
        a(f"s_add_u32 {s(S_H4)}, {s(S_H4)}, 1")
        a(f"s_and_b32 {s(S_H4)}, {s(S_H4)}, 3")
    a(f"s_add_u32 {s(S_T)}, {s(S_T)}, 1")
    a(f"s_cmp_lt_u32 {s(S_T)}, 10")
    a(f"s_cbranch_scc1 {L}_loop")
    a("s_waitcnt vmcnt(0) lgkmcnt(0)")
    a("s_barrier")

def stats_exchange(a, NT, gtype):
    T = V_T0
    a(f"v_and_b32 {v(T)}, 15, {v(V_LANE)}")
    a(f"v_lshrrev_b32 {v(T+1)}, 4, {v(V_LANE)}")
    a(f"s_lshl_b32 {s(S_TMP)}, {s(S_WM)}, 11")
    a(f"s_lshl_b32 {s(S_TMP2)}, {s(S_WN)}, 4")
    a(f"s_add_u32 {s(S_TMP)}, {s(S_TMP)}, {s(S_TMP2)}")
    a(f"v_lshlrev_b32 {v(T+2)}, 5, {v(T)}")
    a(f"v_lshl_add_u32 {v(T+2)}, {v(T+1)}, 2, {v(T+2)}")
    a(f"v_add_u32 {v(T+2)}, {s(S_TMP)}, {v(T+2)}")
    for f in range(4):
        a(f"ds_write_b32 {v(T+2)}, {v(V_XS1+f)} offset:{f*512}")
        a(f"ds_write_b32 {v(T+2)}, {v(V_XS2+f)} offset:{8192 + f*512}")
    a(f"s_mul_i32 {s(S_TMP)}, {s(S_WN)}, {16*NT*64}")
    a(f"s_lshl_b32 {s(S_TMP2)}, {s(S_WM)}, 4")
    a(f"s_add_u32 {s(S_TMP)}, {s(S_TMP)}, {s(S_TMP2)}")
    a(f"v_lshlrev_b32 {v(T+3)}, 6, {v(T)}")
    a(f"v_lshl_add_u32 {v(T+3)}, {v(T+1)}, 2, {v(T+3)}")
    a(f"v_add_u32 {v(T+3)}, {s(S_TMP)}, {v(T+3)}")
    for j in range(NT):
        a(f"ds_write_b32 {v(T+3)}, {v(V_CS+j)} offset:{16384 + j*1024}")
    a("s_waitcnt lgkmcnt(0)")
    a("s_barrier")
    lcol = a.newlabel("rcol"); ldone = a.newlabel("rdone")
    R = V_X[0]
    a(f"s_cmp_ge_u32 {s(S_W)}, 4")
    a(f"s_cbranch_scc1 {lcol}")
    a(f"v_lshlrev_b32 {v(T)}, 5, v0")
    a(f"ds_read_b128 {v(R,4)}, {v(T)}")
    a(f"ds_read_b128 {v(R+4,4)}, {v(T)} offset:16")
    a(f"ds_read_b128 {v(R+8,4)}, {v(T)} offset:8192")
    a(f"ds_read_b128 {v(R+12,4)}, {v(T)} offset:8208")
    a("s_waitcnt lgkmcnt(0)")
    for b in (R, R+8):
        for i in range(4): a(f"v_add_f32 {v(b+i)}, {v(b+i)}, {v(b+4+i)}")
        a(f"v_add_f32 {v(b)}, {v(b)}, {v(b+1)}")
        a(f"v_add_f32 {v(b+2)}, {v(b+2)}, {v(b+3)}")
        a(f"v_add_f32 {v(b)}, {v(b)}, {v(b+2)}")
    a(f"v_mul_f32 {v(R)}, {fhex(1.0/640)}, {v(R)}")
    a(f"v_mul_f32 {v(R+8)}, {fhex(1.0/640)}, {v(R+8)}")
    a(f"v_fma_f32 {v(R+8)}, -{v(R)}, {v(R)}, {v(R+8)}")
    a(f"v_max_f32 {v(R+8)}, 0, {v(R+8)}")
    a(f"v_add_f32 {v(R+8)}, {fhex(1e-5)}, {v(R+8)}")
    a(f"v_rsq_f32 {v(R+9)}, {v(R+8)}")
    a(f"v_sub_f32 {v(R+4)}, 0, {v(R)}")
    if gtype:
        KG = 2.0 * 0.7978845608028654 * LOG2E
        a(f"v_mul_f32 {v(R+5)}, {fhex(-KG)}, {v(R+9)}")
        a(f"v_mul_f32 {v(R+6)}, {v(R+9)}, {v(R+9)}")
        a(f"v_mul_f32 {v(R+6)}, {v(R+6)}, {v(R+5)}")
        a(f"v_mul_f32 {v(R+6)}, {fhex(0.044715)}, {v(R+6)}")
        a(f"v_mov_b32 {v(R+7)}, {v(R+8)}")
    else:
        a(f"v_mul_f32 {v(R+5)}, {s(S_E3)}, {v(R+9)}")
        a(f"v_mov_b32 {v(R+6)}, 0")
        a(f"v_mov_b32 {v(R+7)}, 0")
    a(f"v_lshlrev_b32 {v(T)}, 4, v0")
    a(f"ds_write_b128 {v(T)}, {v(R+4,4)} offset:32768")
    a(f"s_branch {ldone}")
    a.label(lcol)
    a(f"v_subrev_u32 {v(T)}, 256, v0")
    a(f"v_lshlrev_b32 {v(T+1)}, 6, {v(T)}")
    for q in range(4):
        a(f"ds_read_b128 {v(R+4*q,4)}, {v(T+1)} offset:{16384 + 16*q}")
    a("s_waitcnt lgkmcnt(0)")
    for i in range(4): a(f"v_add_f32 {v(R+i)}, {v(R+i)}, {v(R+4+i)}")
    for i in range(4): a(f"v_add_f32 {v(R+8+i)}, {v(R+8+i)}, {v(R+12+i)}")
    for i in range(4): a(f"v_add_f32 {v(R+i)}, {v(R+i)}, {v(R+8+i)}")
    a(f"v_add_f32 {v(R)}, {v(R)}, {v(R+1)}")
    a(f"v_add_f32 {v(R+2)}, {v(R+2)}, {v(R+3)}")
    a(f"v_add_f32 {v(R)}, {v(R)}, {v(R+2)}")
    a(f"v_lshlrev_b32 {v(T)}, 2, {v(T)}")
    a(f"ds_write_b32 {v(T)}, {v(R)} offset:40960")
    a.label(ldone)
    a("s_waitcnt lgkmcnt(0)")
    a("s_barrier")
    a(f"v_and_b32 {v(T)}, 15, {v(V_LANE)}")
    a(f"v_lshlrev_b32 {v(T)}, 4, {v(T)}")
    a(f"s_lshl_b32 {s(S_TMP)}, {s(S_WM)}, 10")
    a(f"v_add_u32 {v(T)}, {s(S_TMP)}, {v(T)}")
    for f in range(4):
        a(f"ds_read_b128 {v(V_X[0]+4*f,4)}, {v(T)} offset:{32768 + f*256}")
    a(f"v_lshrrev_b32 {v(T+1)}, 4, {v(V_LANE)}")
    a(f"v_lshlrev_b32 {v(T+1)}, 4, {v(T+1)}")
    a(f"s_mul_i32 {s(S_TMP)}, {s(S_WN)}, {16*NT*4}")
    a(f"v_add_u32 {v(T+1)}, {s(S_TMP)}, {v(T+1)}")
    for j in range(NT):
        a(f"ds_read_b128 {v(V_WF[0]+4*j,4)}, {v(T+1)} offset:{40960 + j*64}")
    a("s_waitcnt lgkmcnt(0)")

def setup_common(a):
    a(f"v_and_b32 {v(V_LANE)}, 63, v0")
    a(f"v_lshrrev_b32 v1, 6, v0")
    a("s_nop 0")
    a(f"v_readfirstlane_b32 {s(S_W)}, v1")
    a("s_nop 0")
    a(f"s_and_b32 {s(S_WM)}, {s(S_W)}, 3")
    a(f"s_lshr_b32 {s(S_WN)}, {s(S_W)}, 2")

def setup_gemm(a, NT, RS, CPR, seg0_mul, wrowbytes, gtype):
    T = V_T0
    L = V_LANE
    a(f"s_mov_b32 {s(S_ONES)}, 0x3f803f80")
    a(f"s_mov_b32 {s(S_BROW)}, {32*wrowbytes}")
    for i in range(4*NT*4): a(f"v_mov_b32 {v(V_ACC+i)}, 0")
    for i in range(14): a(f"v_mov_b32 {v(V_XS1+i)}, 0")
    for i in range(3): a(f"v_mov_b32 {v(V_DM[i])}, 0")
    for r in (S_BOFF, S_BM0, S_AW, S_AOFF, S_AT, S_AM0, S_BW): a(f"s_mov_b32 {s(r)}, 0")
    a(f"v_and_b32 {v(T)}, 15, {v(L)}")
    a(f"v_lshrrev_b32 {v(T+1)}, 4, {v(L)}")
    a(f"v_lshrrev_b32 {v(T+2)}, 1, {v(T)}")
    a(f"v_xor_b32 {v(T+2)}, {v(T+2)}, {v(T+1)}")
    a(f"v_lshlrev_b32 {v(T+2)}, 4, {v(T+2)}")
    a(f"v_lshl_add_u32 {v(T+2)}, {v(T)}, 7, {v(T+2)}")
    a(f"s_lshl_b32 {s(S_TMP)}, {s(S_WM)}, 13")
    a(f"v_add_u32 {v(V_AB[0])}, {s(S_TMP)}, {v(T+2)}")
    a(f"v_xor_b32 {v(V_AB[1])}, 64, {v(V_AB[0])}")
    a(f"v_lshrrev_b32 {v(T+2)}, 2, {v(T)}")
    a(f"v_lshl_add_u32 {v(T+2)}, {v(T+1)}, 3, {v(T+2)}")
    a(f"v_mul_u32_u24 {v(T+2)}, {RS}, {v(T+2)}")
    a(f"v_and_b32 {v(T+3)}, 3, {v(L)}")
    a(f"v_lshl_add_u32 {v(T+2)}, {v(T+3)}, 3, {v(T+2)}")
    a(f"s_mul_i32 {s(S_TMP)}, {s(S_WN)}, {seg0_mul}")
    a(f"s_lshl_b32 {s(S_TMP2)}, {s(S_TMP)}, 5")
    a(f"s_add_u32 {s(S_TMP2)}, {s(S_TMP2)}, {B_RING}")
    a(f"v_add_u32 {v(T+2)}, {s(S_TMP2)}, {v(T+2)}")
    a(f"v_and_b32 {v(T+3)}, 1, {v(T+1)}")
    a(f"v_lshlrev_b32 {v(T+3)}, 5, {v(T+3)}")
    a(f"v_add_u32 {v(T+4)}, {v(T+2)}, {v(T+3)}")
    a(f"v_sub_u32 {v(T+5)}, {v(T+2)}, {v(T+3)}")
    a(f"s_and_b32 {s(S_TMP)}, {s(S_TMP)}, 1")
    a(f"s_cmp_eq_u32 {s(S_TMP)}, 0")
    a(f"s_cselect_b64 vcc, -1, 0")
    a(f"v_cndmask_b32 {v(V_BB[0])}, {v(T+5)}, {v(T+4)}, vcc")
    a(f"v_cndmask_b32 {v(V_BB[1])}, {v(T+4)}, {v(T+5)}, vcc")
    lb = a.newlabel("sB"); lj = a.newlabel("sJ")
    a(f"s_cmp_eq_u32 {s(S_WN)}, 0")
    a(f"s_cbranch_scc1 {lb}")
    a(f"v_lshrrev_b32 {v(T)}, 3, {v(L)}")
    a(f"v_mul_u32_u24 {v(T)}, 1280, {v(T)}")
    a(f"v_and_b32 {v(T+2)}, 7, {v(L)}")
    a(f"v_xor_b32 {v(T+2)}, {v(T+2)}, {v(T+1)}")
    a(f"v_lshl_add_u32 {v(V_DM[0])}, {v(T+2)}, 4, {v(T)}")
    a(f"v_xor_b32 {v(V_DM[1])}, 64, {v(V_DM[0])}")
    a(f"s_lshl_b32 {s(S_TMP)}, {s(S_MB)}, 8")
    a(f"s_lshl_b32 {s(S_TMP2)}, {s(S_WM)}, 5")
    a(f"s_add_u32 {s(S_TMP)}, {s(S_TMP)}, {s(S_TMP2)}")
    a(f"s_mul_i32 {s(S_AOFF)}, {s(S_TMP)}, 1280")
    a(f"s_lshl_b32 {s(S_AM0)}, {s(S_WM)}, 12")
    a(f"s_branch {lj}")
    a.label(lb)
    if gtype:
        a(f"s_and_b32 {s(S_TMP)}, {s(S_W)}, 1")
        a(f"s_mul_i32 {s(S_TMP)}, {s(S_TMP)}, 3")
        a(f"s_lshr_b32 {s(S_TMP2)}, {s(S_W)}, 1")
        a(f"s_mul_i32 {s(S_TMP2)}, {s(S_TMP2)}, 6144")
    else:
        a(f"s_mul_i32 {s(S_TMP)}, {s(S_W)}, 3")
        a(f"s_mov_b32 {s(S_TMP2)}, 0")
    a(f"s_lshl_b32 {s(S_BM0)}, {s(S_TMP)}, 10")
    a(f"s_add_u32 {s(S_BM0)}, {s(S_BM0)}, {s(S_TMP2)}")
    a(f"s_add_u32 {s(S_BM0)}, {s(S_BM0)}, {B_RING}")
    a(f"s_lshl_b32 {s(S_TMP)}, {s(S_TMP)}, 6")
    magic, sh = {12: (43691, 19), 20: (52429, 20)}[CPR]
    colbytes = 192 if gtype else 320
    a(f"s_mul_i32 {s(S_TMP2)}, {s(S_NB)}, {colbytes}")
    for i in range(3):
        a(f"v_add_u32 {v(T)}, {s(S_TMP)}, {v(L)}")
        if i: a(f"v_add_u32 {v(T)}, {64*i}, {v(T)}")
        a(f"v_mul_u32_u24 {v(T+2)}, {magic}, {v(T)}")
        a(f"v_lshrrev_b32 {v(T+2)}, {sh}, {v(T+2)}")
        a(f"v_mul_u32_u24 {v(T+3)}, {CPR}, {v(T+2)}")
        a(f"v_sub_u32 {v(T+3)}, {v(T)}, {v(T+3)}")
        a(f"v_lshrrev_b32 {v(T+4)}, 3, {v(T+2)}")
        a(f"v_and_b32 {v(T+4)}, 1, {v(T+4)}")
        a(f"v_lshlrev_b32 {v(T+4)}, 1, {v(T+4)}")
        a(f"v_xor_b32 {v(T+3)}, {v(T+3)}, {v(T+4)}")
        a(f"v_mul_u32_u24 {v(T+2)}, {wrowbytes}, {v(T+2)}")
        a(f"v_lshl_add_u32 {v(T+2)}, {v(T+3)}, 4, {v(T+2)}")
        a(f"v_add_u32 {v(V_DM[i])}, {s(S_TMP2)}, {v(T+2)}")
        if not gtype:
            a(f"v_cmp_le_u32 vcc, 640, {v(T)}")
            a(f"v_mov_b32 {v(T+5)}, 0x40000000")
            a("s_nop 0")
            a(f"v_cndmask_b32 {v(V_DM[i])}, {v(V_DM[i])}, {v(T+5)}, vcc")
    a(f"s_mov_b32 {s(S_BOFF)}, 0")
    a.label(lj)

def epilogue_G(a):
    NT = 6
    T = V_T0
    L = V_LANE
    TS = V_X[0]; CS = V_WF[0]
    W = V_X[1]
    a(f"v_lshrrev_b32 {v(T)}, 5, {v(L)}")
    a(f"v_lshlrev_b32 {v(T)}, 8, {v(T)}")
    a(f"v_and_b32 {v(T+1)}, 15, {v(L)}")
    a(f"v_lshl_add_u32 {v(T)}, {v(T+1)}, 4, {v(T)}")
    a(f"v_bfe_u32 {v(T+1)}, {v(L)}, 4, 1")
    a(f"v_lshl_add_u32 {v(T)}, {v(T+1)}, 3, {v(T)}")
    a(f"s_lshl_b32 {s(S_TMP)}, {s(S_MB)}, 4")
    a(f"s_lshl_b32 {s(S_TMP2)}, {s(S_WM)}, 2")
    a(f"s_add_u32 {s(S_TMP)}, {s(S_TMP)}, {s(S_TMP2)}")
    a(f"s_mul_i32 {s(S_E0)}, {s(S_TMP)}, 55296")
    a(f"s_mul_i32 {s(S_TMP)}, {s(S_NB)}, 6")
    a(f"s_mul_i32 {s(S_TMP2)}, {s(S_WN)}, 3")
    a(f"s_add_u32 {s(S_TMP)}, {s(S_TMP)}, {s(S_TMP2)}")
    a(f"s_lshl_b32 {s(S_TMP)}, {s(S_TMP)}, 9")
    a(f"s_add_u32 {s(S_E0)}, {s(S_E0)}, {s(S_TMP)}")
    a(f"s_add_u32 {s(S_E0)}, {s(S_E0)}, {WS_H}")
    outregs = [V_WF[1] + 2*i for i in range(12)]
    k = 0
    for jj in range(3):
        for f in range(4):
            G = acc(f, jj, NT); U = acc(f, jj + 3, NT)
            ts = TS + 4*f
            cg = CS + 4*jj; cu = CS + 4*(jj+3)
            o = outregs[k % 12]; k += 1
            bc = "op_sel:[0,0,0] op_sel_hi:[0,1,1]"
            for p in range(2):
                g2 = v(G+2*p, 2); u2 = v(U+2*p, 2)
                w0 = W + 8*p
                a(f"v_pk_fma_f32 {g2}, {v(ts,2)}, {v(cg+2*p,2)}, {g2} op_sel:[0,0,0] op_sel_hi:[0,1,1]")
                a(f"v_pk_fma_f32 {u2}, {v(ts,2)}, {v(cu+2*p,2)}, {u2} op_sel:[0,0,0] op_sel_hi:[0,1,1]")
            for p in range(2):
                g2 = v(G+2*p, 2); w0 = W + 8*p
                a(f"v_pk_mul_f32 {v(w0,2)}, {g2}, {g2}")
            for p in range(2):
                g2 = v(G+2*p, 2); w0 = W + 8*p
                a(f"v_pk_fma_f32 {v(w0,2)}, {v(ts+2,2)}, {v(w0,2)}, {v(ts,2)} op_sel:[0,0,1] op_sel_hi:[0,1,1]")
            for p in range(2):
                g2 = v(G+2*p, 2); w0 = W + 8*p
                a(f"v_pk_mul_f32 {v(w0,2)}, {v(w0,2)}, {g2}")
            for p in range(2):
                w0 = W + 8*p
                a(f"v_exp_f32 {v(w0)}, {v(w0)}")
                a(f"v_exp_f32 {v(w0+1)}, {v(w0+1)}")
            for p in range(2):
                g2 = v(G+2*p, 2); u2 = v(U+2*p, 2); w0 = W + 8*p
                a(f"v_pk_mul_f32 {v(w0+2,2)}, {g2}, {u2}")
            for p in range(2):
                w0 = W + 8*p
                a(f"v_pk_fma_f32 {v(w0,2)}, {v(ts+2,2)}, {v(w0,2)}, {v(ts+2,2)} op_sel:[1,0,1] op_sel_hi:[1,1,1]")
            for p in range(2):
                w0 = W + 8*p
                a(f"v_rcp_f32 {v(w0)}, {v(w0)}")
                a(f"v_rcp_f32 {v(w0+1)}, {v(w0+1)}")
            a("s_nop 0")
            for p in range(2):
                w0 = W + 8*p
                a(f"v_pk_mul_f32 {v(w0,2)}, {v(w0,2)}, {v(w0+2,2)}")
            for p in range(2):
                w0 = W + 8*p
                a(f"v_cvt_pk_bf16_f32 {v(o+p)}, {v(w0)}, {v(w0+1)}")
            a(f"s_add_u32 {s(S_TMP)}, {s(S_E0)}, {f*55296 + jj*512}")
            a(f"buffer_store_dwordx2 {v(o,2)}, {v(T)}, {s(S_WS,4)}, {s(S_TMP)} offen")

def epilogue_Q(a):
    NT = 5
    T = V_T0
    L = V_LANE
    TS = V_X[0]; CS = V_WF[0]
    OFF = V_X[1]
    YB = V_WF[1]
    lK = a.newlabel("eK"); lV = a.newlabel("eV"); lEnd = a.newlabel("eEnd")
    def compute_y(f, j, o):
        A_ = acc(f, j, NT); ts = TS + 4*f; cs = CS + 4*j
        for p in range(2):
            a2 = v(A_+2*p, 2)
            a(f"v_pk_fma_f32 {a2}, {v(ts,2)}, {v(cs+2*p,2)}, {a2} op_sel:[0,0,0] op_sel_hi:[0,1,1]")
        for p in range(2):
            a2 = v(A_+2*p, 2)
            a(f"v_pk_mul_f32 {a2}, {a2}, {v(ts,2)} op_sel:[0,1] op_sel_hi:[1,1]")
        for p in range(2):
            a(f"v_cvt_pk_bf16_f32 {v(o+p)}, {v(A_+2*p)}, {v(A_+2*p+1)}")
    a(f"s_and_b32 {s(S_TMP)}, {s(S_NB)}, 3")
    a(f"s_lshl_b32 {s(S_TMP)}, {s(S_TMP)}, 3")
    a(f"s_lshl_b32 {s(S_TMP2)}, {s(S_WN)}, 2")
    a(f"s_add_u32 {s(S_E1)}, {s(S_TMP)}, {s(S_TMP2)}")
    a(f"v_and_b32 {v(T)}, 15, {v(L)}")
    a(f"v_lshrrev_b32 {v(T+1)}, 4, {v(L)}")
    a(f"s_cmp_eq_u32 {s(S_SEC)}, 1")
    a(f"s_cbranch_scc1 {lK}")
    a(f"s_cmp_eq_u32 {s(S_SEC)}, 2")
    a(f"s_cbranch_scc1 {lV}")
    for j in range(5):
        a(f"v_add_u32 {v(T+2)}, {4*j}, {v(T+1)}")
        a(f"v_mul_u32_u24 {v(T+3)}, 52429, {v(T+2)}")
        a(f"v_lshrrev_b32 {v(T+3)}, 18, {v(T+3)}")
        a(f"v_mul_u32_u24 {v(T+4)}, 5, {v(T+3)}")
        a(f"v_sub_u32 {v(T+4)}, {v(T+2)}, {v(T+4)}")
        a(f"v_mul_u32_u24 {v(T+3)}, {2048*48}, {v(T+3)}")
        a(f"v_lshl_add_u32 {v(T+3)}, {v(T+4)}, 3, {v(T+3)}")
        a(f"v_mul_u32_u24 {v(T+4)}, 48, {v(T)}")
        a(f"v_add_u32 {v(OFF+j)}, {v(T+3)}, {v(T+4)}")
    a(f"s_mul_i32 {s(S_E0)}, {s(S_E1)}, 98304")
    a(f"s_lshl_b32 {s(S_TMP)}, {s(S_MB)}, 8")
    a(f"s_lshl_b32 {s(S_TMP2)}, {s(S_WM)}, 6")
    a(f"s_add_u32 {s(S_TMP)}, {s(S_TMP)}, {s(S_TMP2)}")
    a(f"s_mul_i32 {s(S_TMP)}, {s(S_TMP)}, 48")
    a(f"s_add_u32 {s(S_E0)}, {s(S_E0)}, {s(S_TMP)}")
    a(f"s_add_u32 {s(S_E0)}, {s(S_E0)}, {WS_Q}")
    k = 0
    for f in range(4):
        for j in range(5):
            o = YB + 2*(k % 12); k += 1
            compute_y(f, j, o)
            a(f"s_add_u32 {s(S_TMP)}, {s(S_E0)}, {f*16*48}")
            a(f"buffer_store_dwordx2 {v(o,2)}, {v(OFF+j)}, {s(S_WS,4)}, {s(S_TMP)} offen")
    a(f"s_branch {lEnd}")
    a.label(lK)
    a(f"v_and_b32 {v(T+5)}, 3, {v(T)}")
    a(f"v_bfe_u32 {v(T+2)}, {v(T)}, 2, 1")
    a(f"v_lshl_or_b32 {v(T+5)}, {v(T+2)}, 3, {v(T+5)}")
    a(f"v_bfe_u32 {v(T+2)}, {v(T)}, 3, 1")
    a(f"v_lshl_or_b32 {v(T+5)}, {v(T+2)}, 2, {v(T+5)}")
    for j in range(5):
        a(f"v_add_u32 {v(T+2)}, {4*j}, {v(T+1)}")
        a(f"v_mul_u32_u24 {v(T+3)}, 52429, {v(T+2)}")
        a(f"v_lshrrev_b32 {v(T+3)}, 18, {v(T+3)}")
        a(f"v_mul_u32_u24 {v(T+4)}, 5, {v(T+3)}")
        a(f"v_sub_u32 {v(T+4)}, {v(T+2)}, {v(T+4)}")
        a(f"v_mul_u32_u24 {v(T+3)}, 81920, {v(T+3)}")
        a(f"v_lshrrev_b32 {v(T+2)}, 1, {v(T+4)}")
        a(f"v_lshl_add_u32 {v(T+3)}, {v(T+2)}, 9, {v(T+3)}")
        a(f"v_and_b32 {v(T+2)}, 1, {v(T+4)}")
        a(f"v_lshl_add_u32 {v(T+3)}, {v(T+2)}, 3, {v(T+3)}")
        a(f"v_cmp_eq_u32 vcc, 4, {v(T+4)}")
        a(f"v_mov_b32 {v(T+2)}, 4")
        a(f"v_mov_b32 {v(T+4)}, 3")
        a(f"v_cndmask_b32 {v(T+2)}, {v(T+2)}, {v(T+4)}, vcc")
        a(f"v_lshlrev_b32 {v(T+4)}, {v(T+2)}, {v(T+5)}")
        a(f"v_add_u32 {v(OFF+j)}, {v(T+3)}, {v(T+4)}")
        a(f"v_lshlrev_b32 {v(T+4)}, {v(T+2)}, 16")
        a.lines.pop()
        a(f"v_mov_b32 {v(T+4)}, 16")
        a(f"v_lshlrev_b32 {v(T+4)}, {v(T+2)}, {v(T+4)}")
        a(f"v_add_u32 {v(OFF+5+j)}, {v(OFF+j)}, {v(T+4)}")
    a(f"s_mul_i32 {s(S_E0)}, {s(S_E1)}, 81920")
    a(f"s_lshl_b32 {s(S_TMP)}, {s(S_MB)}, 3")
    a(f"s_lshl_b32 {s(S_TMP2)}, {s(S_WM)}, 1")
    a(f"s_add_u32 {s(S_TMP)}, {s(S_TMP)}, {s(S_TMP2)}")
    a(f"s_mul_i32 {s(S_TMP)}, {s(S_TMP)}, 1280")
    a(f"s_add_u32 {s(S_E0)}, {s(S_E0)}, {s(S_TMP)}")
    a(f"s_add_u32 {s(S_E2)}, {s(S_E0)}, {WS_K}")
    k = 0
    for f in range(4):
        for j in range(5):
            o = YB + 2*(k % 12); k += 1
            compute_y(f, j, o)
            a(f"s_add_u32 {s(S_TMP)}, {s(S_E2)}, {(f>>1)*1280}")
            a(f"buffer_store_dwordx2 {v(o,2)}, {v(OFF+5*(f&1)+j)}, {s(S_WS,4)}, {s(S_TMP)} offen")
    a(f"s_branch {lEnd}")
    a.label(lV)
    RSV = 176
    SCR = 49152
    a(f"s_mul_i32 {s(S_TMP)}, {s(S_W)}, {64*RSV}")
    a(f"s_add_u32 {s(S_TMP)}, {s(S_TMP)}, {SCR}")
    a(f"v_mul_u32_u24 {v(T+2)}, {RSV}, {v(T)}")
    a(f"v_lshl_add_u32 {v(T+2)}, {v(T+1)}, 3, {v(T+2)}")
    a(f"v_add_u32 {v(OFF+10)}, {s(S_TMP)}, {v(T+2)}")
    a(f"v_lshrrev_b32 {v(T+2)}, 2, {v(T)}")
    a(f"v_lshl_add_u32 {v(T+2)}, {v(T+1)}, 2, {v(T+2)}")
    a(f"v_mul_u32_u24 {v(T+2)}, {RSV}, {v(T+2)}")
    a(f"v_and_b32 {v(T+3)}, 3, {v(L)}")
    a(f"v_lshl_add_u32 {v(T+2)}, {v(T+3)}, 3, {v(T+2)}")
    a(f"v_add_u32 {v(OFF+11)}, {s(S_TMP)}, {v(T+2)}")
    for j in range(5):
        a(f"v_add_u32 {v(T+2)}, {16*j}, {v(T)}")
        a(f"v_mul_u32_u24 {v(T+3)}, 52429, {v(T+2)}")
        a(f"v_lshrrev_b32 {v(T+3)}, 20, {v(T+3)}")
        a(f"v_mul_u32_u24 {v(T+4)}, 20, {v(T+3)}")
        a(f"v_sub_u32 {v(T+4)}, {v(T+2)}, {v(T+4)}")
        a(f"v_mul_u32_u24 {v(T+3)}, 81920, {v(T+3)}")
        a(f"v_lshl_add_u32 {v(T+3)}, {v(T+4)}, 4, {v(T+3)}")
        a(f"v_lshrrev_b32 {v(T+2)}, 1, {v(T+1)}")
        a(f"v_mul_u32_u24 {v(T+2)}, 320, {v(T+2)}")
        a(f"v_add_u32 {v(T+3)}, {v(T+3)}, {v(T+2)}")
        a(f"v_and_b32 {v(T+2)}, 1, {v(T+1)}")
        a(f"v_lshl_add_u32 {v(OFF+j)}, {v(T+2)}, 3, {v(T+3)}")
    a(f"s_mul_i32 {s(S_E0)}, {s(S_E1)}, 81920")
    a(f"s_lshl_b32 {s(S_TMP)}, {s(S_MB)}, 3")
    a(f"s_lshl_b32 {s(S_TMP2)}, {s(S_WM)}, 1")
    a(f"s_add_u32 {s(S_TMP)}, {s(S_TMP)}, {s(S_TMP2)}")
    a(f"s_mul_i32 {s(S_TMP)}, {s(S_TMP)}, 1280")
    a(f"s_add_u32 {s(S_E0)}, {s(S_E0)}, {s(S_TMP)}")
    a(f"s_add_u32 {s(S_E2)}, {s(S_E0)}, {WS_V}")
    k = 0
    for f in range(4):
        for j in range(5):
            o = YB + 2*(k % 12); k += 1
            compute_y(f, j, o)
            a(f"ds_write_b64 {v(OFF+10)}, {v(o,2)} offset:{f*16*RSV + j*32}")
    a("s_waitcnt lgkmcnt(0)")
    k = 0
    for f in range(4):
        for j in range(5):
            o = V_ACC + 2*k; k += 1
            a(f"ds_read_b64_tr_b16 {v(o,2)}, {v(OFF+11)} offset:{f*16*RSV + j*32}")
    a("s_waitcnt lgkmcnt(0)")
    k = 0
    for f in range(4):
        for j in range(5):
            o = V_ACC + 2*k; k += 1
            a(f"s_add_u32 {s(S_TMP)}, {s(S_E2)}, {(f>>1)*1280 + (f&1)*640}")
            a(f"buffer_store_dwordx2 {v(o,2)}, {v(OFF+j)}, {s(S_WS,4)}, {s(S_TMP)} offen")
    a.label(lEnd)

def transposer(a):
    T = V_T0; L = V_LANE
    a(f"s_lshl_b32 {s(S_TMP)}, {s(S_NB)}, 3")
    a(f"s_add_u32 {s(S_E0)}, {s(S_TMP)}, {s(S_W)}")
    a(f"v_lshrrev_b32 {v(T)}, 3, {v(L)}")
    a(f"v_mul_u32_u24 {v(T)}, 1280, {v(T)}")
    a(f"v_bfe_u32 {v(T+1)}, {v(L)}, 4, 1")
    a(f"v_lshlrev_b32 {v(T+1)}, 1, {v(T+1)}")
    a(f"v_and_b32 {v(T+2)}, 7, {v(L)}")
    a(f"v_xor_b32 {v(T+2)}, {v(T+2)}, {v(T+1)}")
    a(f"v_lshl_add_u32 {v(V_DM[0])}, {v(T+2)}, 4, {v(T)}")
    a(f"v_xor_b32 {v(V_DM[1])}, 64, {v(V_DM[0])}")
    a(f"v_and_b32 {v(T)}, 15, {v(L)}")
    a(f"v_lshrrev_b32 {v(T+1)}, 4, {v(L)}")
    a(f"v_lshrrev_b32 {v(T+2)}, 2, {v(T)}")
    a(f"v_lshl_add_u32 {v(T+3)}, {v(T+1)}, 3, {v(T+2)}")
    a(f"v_lshlrev_b32 {v(T+3)}, 7, {v(T+3)}")
    a(f"v_and_b32 {v(T+4)}, 3, {v(L)}")
    a(f"v_lshl_add_u32 {v(T+3)}, {v(T+4)}, 3, {v(T+3)}")
    a(f"v_lshrrev_b32 {v(T+2)}, 1, {v(T+2)}")
    a(f"v_and_b32 {v(T+1)}, 1, {v(T+1)}")
    a(f"v_lshl_or_b32 {v(T+2)}, {v(T+1)}, 1, {v(T+2)}")
    a(f"s_mul_i32 {s(S_TMP)}, {s(S_W)}, 4096")
    a(f"v_add_u32 {v(T+3)}, {s(S_TMP)}, {v(T+3)}")
    for jj in range(4):
        a(f"v_xor_b32 {v(T+4)}, {jj}, {v(T+2)}")
        a(f"v_lshl_add_u32 {v(V_XS1+jj)}, {v(T+4)}, 5, {v(T+3)}")
    a(f"v_lshlrev_b32 {v(V_XS2)}, 4, {v(L)}")
    loop = a.newlabel("tloop"); done = a.newlabel("tdone"); lwd = a.newlabel("twd"); lgo = a.newlabel("tgo")
    a.label(loop)
    a(f"s_cmp_ge_u32 {s(S_E0)}, 740")
    a(f"s_cbranch_scc1 {done}")
    a(f"s_cmp_ge_u32 {s(S_E0)}, 200")
    a(f"s_cbranch_scc1 {lwd}")
    a(f"s_mov_b32 {s(S_B)}, s20\ns_mov_b32 {s(S_B+1)}, s21\ns_mov_b32 {s(S_B+2)}, {WO_BYTES}")
    a(f"s_mov_b32 {s(S_E1)}, {s(S_E0)}")
    a(f"s_mov_b32 {s(S_E2)}, 20")
    a(f"s_mov_b32 {s(S_E3)}, {WS_WO}")
    a(f"s_branch {lgo}")
    a.label(lwd)
    a(f"s_mov_b32 {s(S_B)}, s28\ns_mov_b32 {s(S_B+1)}, s29\ns_mov_b32 {s(S_B+2)}, {WD_BYTES}")
    a(f"s_sub_u32 {s(S_E1)}, {s(S_E0)}, 200")
    a(f"s_mov_b32 {s(S_E2)}, 54")
    a(f"s_mov_b32 {s(S_E3)}, {WS_WD}")
    a.label(lgo)
    a(f"s_mov_b32 {s(S_B+3)}, 0x20000")
    a(f"s_mul_i32 {s(S_TMP)}, {s(S_E1)}, 52429")
    a(f"s_lshr_b32 {s(S_TMP)}, {s(S_TMP)}, 19")
    a(f"s_mul_i32 {s(S_TMP2)}, {s(S_TMP)}, 10")
    a(f"s_sub_u32 {s(S_TMP2)}, {s(S_E1)}, {s(S_TMP2)}")
    a(f"s_mul_i32 {s(S_AOFF)}, {s(S_TMP)}, {32*1280}")
    a(f"s_lshl_b32 {s(S_AT)}, {s(S_TMP2)}, 7")
    a(f"s_add_u32 {s(S_AOFF)}, {s(S_AOFF)}, {s(S_AT)}")
    a(f"s_mul_i32 {s(S_AM0)}, {s(S_W)}, 4096")
    for i in range(4):
        a(f"s_add_u32 m0, {s(S_AM0)}, {i*1024}")
        a(f"s_add_u32 {s(S_AT)}, {s(S_AOFF)}, {i*8*1280}")
        a(f"buffer_load_dwordx4 {v(V_DM[i&1])}, {s(S_B,4)}, {s(S_AT)} offen lds")
    a(f"s_lshl_b32 {s(S_TMP2)}, {s(S_TMP2)}, 2")
    a(f"s_mul_i32 {s(S_TMP2)}, {s(S_TMP2)}, {s(S_E2)}")
    a(f"s_add_u32 {s(S_TMP2)}, {s(S_TMP2)}, {s(S_TMP)}")
    a(f"s_lshl_b32 {s(S_TMP2)}, {s(S_TMP2)}, 10")
    a(f"s_add_u32 {s(S_TMP2)}, {s(S_TMP2)}, {s(S_E3)}")
    a(f"s_lshl_b32 {s(S_E2)}, {s(S_E2)}, 10")
    a("s_waitcnt vmcnt(0)")
    for jj in range(4):
        a(f"ds_read_b64_tr_b16 {v(V_ACC+4*jj,2)}, {v(V_XS1+jj)}")
        a(f"ds_read_b64_tr_b16 {v(V_ACC+4*jj+2,2)}, {v(V_XS1+jj)} offset:512")
    a("s_waitcnt lgkmcnt(0)")
    for jj in range(4):
        a(f"buffer_store_dwordx4 {v(V_ACC+4*jj,4)}, {v(V_XS2)}, {s(S_WS,4)}, {s(S_TMP2)} offen")
        a(f"s_add_u32 {s(S_TMP2)}, {s(S_TMP2)}, {s(S_E2)}")
    a(f"s_add_u32 {s(S_E0)}, {s(S_E0)}, 128")
    a(f"s_branch {loop}")
    a.label(done)

def gen_k1(a, name="k1_kernel"):
    header(a, name)
    lend = "L_k1_end"; lG = "L_k1_G"; lT = "L_k1_T"
    a("s_cmp_ge_u32 s2, 256")
    a(f"s_cbranch_scc1 {lend}")
    a("s_load_dwordx4 s[16:19], s[0:1], 0")
    a("s_load_dwordx4 s[20:23], s[0:1], 16")
    a("s_load_dwordx4 s[24:27], s[0:1], 32")
    a("s_load_dwordx2 s[28:29], s[0:1], 48")
    a("s_load_dwordx2 s[30:31], s[0:1], 72")
    setup_common(a)
    a(f"s_and_b32 {s(S_TMP)}, s2, 7")
    a(f"s_lshr_b32 {s(S_TMP2)}, s2, 3")
    a(f"s_and_b32 {s(S_MB)}, {s(S_TMP)}, 1")
    a(f"s_lshl_b32 {s(S_MB)}, {s(S_MB)}, 2")
    a(f"s_and_b32 {s(S_E0)}, {s(S_TMP2)}, 3")
    a(f"s_add_u32 {s(S_MB)}, {s(S_MB)}, {s(S_E0)}")
    a(f"s_lshr_b32 {s(S_E1)}, {s(S_TMP)}, 1")
    a(f"s_lshr_b32 {s(S_E2)}, {s(S_TMP2)}, 2")
    a(f"s_lshl_b32 {s(S_NB)}, {s(S_E2)}, 2")
    a(f"s_add_u32 {s(S_NB)}, {s(S_NB)}, {s(S_E1)}")
    a("s_waitcnt lgkmcnt(0)")
    a(f"s_mov_b32 {s(S_X)}, s16\ns_mov_b32 {s(S_X+1)}, s17\ns_mov_b32 {s(S_X+2)}, {X_BYTES}\ns_mov_b32 {s(S_X+3)}, 0x20000")
    a(f"s_mov_b32 {s(S_WS)}, s30\ns_mov_b32 {s(S_WS+1)}, s31\ns_mov_b32 {s(S_WS+2)}, 0x2000000\ns_mov_b32 {s(S_WS+3)}, 0x20000")
    a(f"s_cmp_ge_u32 {s(S_NB)}, 30")
    a(f"s_cbranch_scc1 {lT}")
    a(f"s_cmp_ge_u32 {s(S_NB)}, 12")
    a(f"s_cbranch_scc1 {lG}")
    a(f"s_mov_b32 {s(S_B)}, s18\ns_mov_b32 {s(S_B+1)}, s19\ns_mov_b32 {s(S_B+2)}, {WQKV_BYTES}\ns_mov_b32 {s(S_B+3)}, 0x20000")
    a(f"s_lshr_b32 {s(S_SEC)}, {s(S_NB)}, 2")
    a(f"s_cmp_eq_u32 {s(S_SEC)}, 0")
    a(f"s_cselect_b32 {s(S_E3)}, {fhex(QSCALE)}, 1.0")
    setup_gemm(a, 5, 320, 20, 5, 3840, False)
    main_loop(a, 5, 320, [(0, j) for j in range(5)], "k1q")
    stats_exchange(a, 5, False)
    epilogue_Q(a)
    a("s_endpgm")
    a.label(lG)
    a(f"s_sub_u32 {s(S_NB)}, {s(S_NB)}, 12")
    a(f"s_cmp_lt_u32 {s(S_W)}, 2")
    a(f"s_cselect_b32 {s(S_B)}, s24, s26")
    a(f"s_cselect_b32 {s(S_B+1)}, s25, s27")
    a(f"s_mov_b32 {s(S_B+2)}, {WG_BYTES}\ns_mov_b32 {s(S_B+3)}, 0x20000")
    setup_gemm(a, 6, 192, 12, 3, 3456, True)
    main_loop(a, 6, 192, [(0, 0), (0, 1), (0, 2), (6144, 0), (6144, 1), (6144, 2)], "k1g")
    stats_exchange(a, 6, True)
    epilogue_G(a)
    a("s_endpgm")
    a.label(lT)
    a(f"s_sub_u32 {s(S_E1)}, {s(S_E1)}, 2")
    a(f"s_lshl_b32 {s(S_E1)}, {s(S_E1)}, 3")
    a(f"s_add_u32 {s(S_NB)}, {s(S_E1)}, {s(S_MB)}")
    transposer(a)
    a.label(lend)
    a("s_endpgm")
    return kd(name, NVGPR)
```

```python
from asmlib import *
from common import *

LAUNCH = "; @launch kernel=k2_kernel grid=(256,1,1) block=(512,1,1) lds=98304"
BIAS = 96.0

S_WS = 4
S_HEAD, S_QB, S_W, S_QG, S_KQ = 8, 9, 10, 11, 12
S_KB, S_VB, S_CNT = 13, 14, 15
S_VM = 16
S_KO, S_VO = 18, 19
S_FLAG = 20
S_T0, S_T1 = 21, 28
S_LO = 22
S_M = 24
S_T2, S_T3 = 26, 27

V_O = 16
V_Q = 80
V_S = [112, 128]
V_P = 144
V_KV = [152, 168]
V_AK0, V_AK1, V_AV = 184, 185, 186
V_LANE = 187
V_MX = 188
V_T = 192
NVGPR = 200

def Q0(qt): return V_Q + 8*qt
def Q1(qt): return V_Q + 8*qt + 4
def K0(b): return V_KV[b]
def K1(b): return V_KV[b] + 4
def V0(b): return V_KV[b] + 8
def V1(b): return V_KV[b] + 12
def O(qt): return V_O + 16*qt

def loadK(a, b):
    a(f"buffer_load_dwordx4 {v(K0(b),4)}, {v(V_AK0)}, {s(S_WS,4)}, {s(S_KO)} offen")
    a(f"buffer_load_dwordx2 {v(K1(b),2)}, {v(V_AK1)}, {s(S_WS,4)}, {s(S_KO)} offen")
    a(f"s_add_u32 {s(S_KO)}, {s(S_KO)}, 1280")
def loadV(a, b):
    a(f"s_mov_b64 exec, {s(S_VM,2)}")
    a(f"buffer_load_dwordx4 {v(V0(b),4)}, {v(V_AV)}, {s(S_WS,4)}, {s(S_VO)} offen")
    a(f"buffer_load_dwordx4 {v(V1(b),4)}, {v(V_AV)}, {s(S_WS,4)}, {s(S_VO)} offen offset:640")
    a(f"s_mov_b64 exec, -1")
    a(f"s_add_u32 {s(S_VO)}, {s(S_VO)}, 1280")

def smf(dst, b, qt):
    m1 = f"v_mfma_f32_32x32x16_bf16 {v(dst,16)}, {v(K0(b),4)}, {v(Q0(qt),4)}, 0"
    m2 = f"v_mfma_f32_32x32x16_bf16 {v(dst,16)}, {v(K1(b),4)}, {v(Q1(qt),4)}, {v(dst,16)}"
    return m1, m2

def set_mterms(a, bias):
    T = V_T
    for qt in range(4):
        mx = V_MX + qt
        if bias: a(f"v_add_f32 {v(mx)}, {fhex(bias)}, {v(mx)}")
        a(f"v_sub_f32 {v(T)}, 0, {v(mx)}")
        a(f"v_cndmask_b32 {v(T)}, 0, {v(T)}, {s(S_LO,2)}")
        a(f"v_cvt_pk_bf16_f32 {v(T+1)}, {v(T)}, {v(T)}")
        a(f"v_lshlrev_b32 {v(T+1)}, 16, {v(T+1)}")
        a(f"v_sub_f32 {v(T+2)}, {v(T)}, {v(T+1)}")
        a(f"v_cvt_pk_bf16_f32 {v(T+1)}, {v(T+2)}, {v(T+2)}")
        a(f"v_lshlrev_b32 {v(T+1)}, 16, {v(T+1)}")
        a(f"v_sub_f32 {v(T+3)}, {v(T+2)}, {v(T+1)}")
        a(f"v_cvt_pk_bf16_f32 {v(Q1(qt)+2)}, {v(T)}, {v(T+2)}")
        a(f"v_mov_b32 {v(T+1)}, 0")
        a(f"v_cvt_pk_bf16_f32 {v(Q1(qt)+3)}, {v(T+3)}, {v(T+1)}")

def crosshalf_max(a, reg):
    T = V_T
    a(f"v_mov_b32 {v(T)}, {v(reg)}")
    a(f"v_mov_b32 {v(T+1)}, {v(reg)}")
    a("s_nop 1")
    a(f"v_permlane32_swap_b32 {v(T)}, {v(T+1)}")
    a("s_nop 1")
    a(f"v_max_f32 {v(reg)}, {v(T)}, {v(T+1)}")

def max16(a, mx, sb, first):
    if first:
        a(f"v_max3_f32 {v(mx)}, {v(sb)}, {v(sb+1)}, {v(sb+2)}")
        a(f"v_max_f32 {v(mx)}, {v(mx)}, {v(sb+3)}")
        st = 4
    else:
        st = 0
    for i in range(st, 16, 2):
        a(f"v_max3_f32 {v(mx)}, {v(mx)}, {v(sb+i)}, {v(sb+i+1)}")

def unit(a, b_cur, qt, sb_cur, nxt_b, nxt_qt, vprev_b, vprev_qt, pre=None, mid=None, afterM4=None, afterM2=None, beforeM3=None):
    sb_nxt = V_S[0] if sb_cur == V_S[1] else V_S[1]
    m1, m2 = smf(sb_nxt, nxt_b, nxt_qt)
    m3 = f"v_mfma_f32_32x32x16_bf16 {v(O(qt),16)}, {v(V0(b_cur),4)}, {v(V_P,4)}, {v(O(qt),16)}"
    m4 = f"v_mfma_f32_32x32x16_bf16 {v(O(vprev_qt),16)}, {v(V1(vprev_b),4)}, {v(V_P+4,4)}, {v(O(vprev_qt),16)}"
    E = lambda i: a(f"v_exp_f32 {v(sb_cur+i)}, {v(sb_cur+i)}")
    C = lambda i: a(f"v_cvt_pk_bf16_f32 {v(V_P+i)}, {v(sb_cur+2*i)}, {v(sb_cur+2*i+1)}")
    if pre: pre()
    a(m1)
    for i in range(0, 6): E(i)
    a(m4)
    if afterM4: afterM4()
    E(6); E(7)
    for i in range(4): C(i)
    a(m2)
    if afterM2: afterM2()
    for i in range(8, 14): E(i)
    if beforeM3: beforeM3()
    a(m3)
    E(14); E(15)
    for i in range(4, 8): C(i)

def gen_k2(a, name="k2_kernel"):
    header(a, name)
    T = V_T; L = V_LANE
    a("s_cmp_ge_u32 s2, 256")
    a("s_cbranch_scc1 L_k2_end")
    a("s_load_dwordx2 s[4:5], s[0:1], 72")
    a(f"v_and_b32 {v(L)}, 63, v0")
    a(f"v_lshrrev_b32 v1, 6, v0")
    a("s_nop 0")
    a(f"v_readfirstlane_b32 {s(S_W)}, v1")
    a(f"s_and_b32 {s(S_T0)}, s2, 7")
    a(f"s_lshl_b32 {s(S_HEAD)}, {s(S_T0)}, 2")
    a(f"s_bfe_u32 {s(S_T0)}, s2, 0x20003")
    a(f"s_add_u32 {s(S_HEAD)}, {s(S_HEAD)}, {s(S_T0)}")
    a(f"s_lshr_b32 {s(S_QB)}, s2, 5")
    a(f"s_and_b32 {s(S_QG)}, {s(S_W)}, 1")
    a(f"s_lshr_b32 {s(S_KQ)}, {s(S_W)}, 1")
    a(f"s_mov_b32 s6, 0x2000000\ns_mov_b32 s7, 0x20000")
    a(f"s_mov_b32 {s(S_VM)}, 0x000fffff\ns_mov_b32 {s(S_VM+1)}, 0x000fffff")
    a(f"s_mov_b32 {s(S_LO)}, -1\ns_mov_b32 {s(S_LO+1)}, 0")
    a(f"s_lshl_b32 {s(S_T0)}, {s(S_HEAD)}, 6")
    a(f"s_lshl_b32 {s(S_T1)}, {s(S_KQ)}, 4")
    a(f"s_add_u32 {s(S_T0)}, {s(S_T0)}, {s(S_T1)}")
    a(f"s_mul_i32 {s(S_T0)}, {s(S_T0)}, 1280")
    a(f"s_add_u32 {s(S_KB)}, {s(S_T0)}, {WS_K}")
    a(f"s_add_u32 {s(S_VB)}, {s(S_T0)}, {WS_V}")
    a(f"v_lshlrev_b32 {v(V_AK0)}, 4, {v(L)}")
    a(f"v_and_b32 {v(T)}, 31, {v(L)}")
    a(f"v_lshlrev_b32 {v(V_AK1)}, 3, {v(T)}")
    a(f"v_add_u32 {v(V_AK1)}, 1024, {v(V_AK1)}")
    a(f"v_lshrrev_b32 {v(T+1)}, 5, {v(L)}")
    a(f"v_mul_u32_u24 {v(V_AV)}, 320, {v(T+1)}")
    a(f"v_lshl_add_u32 {v(V_AV)}, {v(T)}, 4, {v(V_AV)}")
    a(f"v_mul_u32_u24 {v(T+2)}, 48, {v(T)}")
    a(f"v_lshl_add_u32 {v(T+3)}, {v(T+1)}, 4, {v(T+2)}")
    a(f"s_lshl_b32 {s(S_T0)}, {s(S_HEAD)}, 11")
    a(f"s_lshl_b32 {s(S_T1)}, {s(S_QB)}, 8")
    a(f"s_add_u32 {s(S_T0)}, {s(S_T0)}, {s(S_T1)}")
    a(f"s_lshl_b32 {s(S_T1)}, {s(S_QG)}, 7")
    a(f"s_add_u32 {s(S_T0)}, {s(S_T0)}, {s(S_T1)}")
    a(f"s_mul_i32 {s(S_T0)}, {s(S_T0)}, 48")
    a(f"s_add_u32 {s(S_T0)}, {s(S_T0)}, {WS_Q}")
    for b in range(2):
        a(f"v_mov_b32 {v(K1(b)+2)}, 0x3f803f80")
        a(f"v_mov_b32 {v(K1(b)+3)}, 0x00003f80")
    a(f"v_cmp_eq_u32 {s(S_M,2)}, 20, {v(T)}")
    a(f"v_cmp_eq_u32 vcc, 24, {v(T)}")
    a("s_nop 1")
    a(f"s_or_b64 {s(S_M,2)}, {s(S_M,2)}, vcc")
    a(f"v_mov_b32 {v(T+4)}, 0x3f803f80")
    a("s_nop 0")
    a(f"v_cndmask_b32 {v(T+4)}, 0, {v(T+4)}, {s(S_M,2)}")
    for b in range(2):
        for i in range(8): a(f"v_mov_b32 {v(V0(b)+i)}, {v(T+4)}")
    for qt in range(4):
        for i in range(4): a(f"v_mov_b32 {v(Q1(qt)+i)}, 0")
    a("s_waitcnt lgkmcnt(0)")
    for qt in range(4):
        a(f"s_add_u32 {s(S_T1)}, {s(S_T0)}, {qt*32*48}")
        a(f"buffer_load_dwordx4 {v(Q0(qt),4)}, {v(T+3)}, {s(S_WS,4)}, {s(S_T1)} offen")
        a(f"s_mov_b64 exec, {s(S_LO,2)}")
        a(f"buffer_load_dwordx2 {v(Q1(qt),2)}, {v(T+2)}, {s(S_WS,4)}, {s(S_T1)} offen offset:32")
        a(f"s_mov_b64 exec, -1")
    a(f"s_mov_b32 {s(S_KO)}, {s(S_KB)}")
    loadK(a, 0); loadK(a, 1)
    a(f"s_mov_b32 {s(S_FLAG)}, 0")
    a("s_waitcnt vmcnt(0)")
    for qt in range(4):
        m1, m2 = smf(V_S[0], 0, qt); a(m1); a(m2)
        m1, m2 = smf(V_S[1], 1, qt); a(m1); a(m2)
        a.nop(12)
        max16(a, V_MX+qt, V_S[0], True)
        max16(a, V_MX+qt, V_S[1], False)
        crosshalf_max(a, V_MX+qt)
    set_mterms(a, BIAS)
    a.label("L_k2_main")
    for i in range(64): a(f"v_mov_b32 {v(V_O+i)}, 0")
    for i in range(8): a(f"v_mov_b32 {v(V_P+i)}, 0")
    a(f"s_mov_b32 {s(S_KO)}, {s(S_KB)}")
    a(f"s_mov_b32 {s(S_VO)}, {s(S_VB)}")
    loadK(a, 0); loadV(a, 0); loadK(a, 1)
    a("s_waitcnt vmcnt(4)")
    m1, m2 = smf(V_S[0], 0, 0); a(m1); a(m2)
    a.nop(12)
    a(f"s_mov_b32 {s(S_CNT)}, 0")
    a.label("L_k2_loop")
    sb = 0
    for b in range(2):
        nb = b ^ 1
        for qt in range(4):
            nxt_b, nxt_qt = (b, qt+1) if qt < 3 else (nb, 0)
            vprev_b, vprev_qt = (b, qt-1) if qt > 0 else (nb, 3)
            kw = {}
            if qt == 0:
                kw["afterM4"] = lambda nb=nb: loadV(a, nb)
                kw["beforeM3"] = lambda: a("s_waitcnt vmcnt(4)")
            if qt == 2:
                kw["afterM2"] = lambda b=b: loadK(a, b)
            if qt == 3:
                kw["pre"] = lambda: a("s_waitcnt vmcnt(4)")
            unit(a, b, qt, V_S[sb], nxt_b, nxt_qt, vprev_b, vprev_qt, **kw)
            sb ^= 1
    a(f"s_add_u32 {s(S_CNT)}, {s(S_CNT)}, 1")
    a(f"s_cmp_lt_u32 {s(S_CNT)}, 8")
    a("s_cbranch_scc1 L_k2_loop")
    a("s_nop 1")
    a(f"v_mfma_f32_32x32x16_bf16 {v(O(3),16)}, {v(V1(1),4)}, {v(V_P+4,4)}, {v(O(3),16)}")
    a("s_waitcnt vmcnt(0)")
    a.nop(12)
    W = V_S[0]
    a(f"s_mov_b64 {s(S_M,2)}, 0")
    for qt in range(4):
        o = O(qt)
        l = W + qt
        a(f"v_cndmask_b32 {v(l)}, {v(o+8)}, {v(o+12)}, {s(S_LO,2)}")
        a(f"v_add_f32 {v(T)}, abs({v(o)}), abs({v(o+1)})")
        for i in range(2, 12): a(f"v_add_f32 {v(T)}, {v(T)}, abs({v(o+i)})")
        a(f"v_add_f32 {v(T)}, {v(T)}, {v(l)}")
        a(f"v_mov_b32 {v(T+1)}, 0x7e800000")
        a(f"v_cmp_nlt_f32 vcc, {v(T)}, {v(T+1)}")
        a("s_nop 1")
        a(f"s_or_b64 {s(S_M,2)}, {s(S_M,2)}, vcc")
    a(f"s_cmp_eq_u64 {s(S_M,2)}, 0")
    a("s_cbranch_scc1 L_k2_ok")
    a(f"s_cmp_lg_u32 {s(S_FLAG)}, 0")
    a("s_cbranch_scc1 L_k2_ok")
    a(f"s_mov_b32 {s(S_FLAG)}, 1")
    for qt in range(4):
        a(f"v_mov_b32 {v(Q1(qt)+2)}, 0")
        a(f"v_mov_b32 {v(Q1(qt)+3)}, 0")
        a(f"v_mov_b32 {v(V_MX+qt)}, 0xff800000")
    a(f"s_mov_b32 {s(S_KO)}, {s(S_KB)}")
    a(f"s_mov_b32 {s(S_CNT)}, 0")
    a.label("L_k2_fb")
    loadK(a, 0)
    a("s_waitcnt vmcnt(0)")
    for qt in range(4):
        m1, m2 = smf(V_S[0], 0, qt); a(m1); a(m2)
        a.nop(12)
        max16(a, V_MX+qt, V_S[0], False)
    a(f"s_add_u32 {s(S_CNT)}, {s(S_CNT)}, 1")
    a(f"s_cmp_lt_u32 {s(S_CNT)}, 16")
    a("s_cbranch_scc1 L_k2_fb")
    for qt in range(4): crosshalf_max(a, V_MX+qt)
    set_mterms(a, 0.0)
    a("s_branch L_k2_main")
    a.label("L_k2_ok")
    a(f"v_and_b32 {v(T)}, 31, {v(L)}")
    a(f"v_mul_u32_u24 {v(T)}, 96, {v(T)}")
    a(f"v_lshrrev_b32 {v(T+1)}, 5, {v(L)}")
    a(f"v_lshl_add_u32 {v(T)}, {v(T+1)}, 4, {v(T)}")
    a(f"s_lshl_b32 {s(S_T0)}, {s(S_KQ)}, 8")
    a(f"s_lshl_b32 {s(S_T1)}, {s(S_QG)}, 7")
    a(f"s_add_u32 {s(S_T0)}, {s(S_T0)}, {s(S_T1)}")
    a(f"s_mul_i32 {s(S_T0)}, {s(S_T0)}, 96")
    a(f"v_add_u32 {v(T)}, {s(S_T0)}, {v(T)}")
    for qt in range(4):
        o = O(qt); l = W + qt
        a(f"v_rcp_f32 {v(T+2)}, {v(l)}")
        a(f"v_log_f32 {v(T+3)}, {v(l)}")
        a("s_nop 0")
        for i in range(12): a(f"v_mul_f32 {v(o+i)}, {v(o+i)}, {v(T+2)}")
        a(f"v_add_f32 {v(T+3)}, {v(T+3)}, {v(V_MX+qt)}")
        off = qt*32*96
        a(f"ds_write_b128 {v(T)}, {v(o,4)} offset:{off}")
        a(f"ds_write_b128 {v(T)}, {v(o+4,4)} offset:{off+32}")
        a(f"s_mov_b64 exec, {s(S_LO,2)}")
        a(f"ds_write_b128 {v(T)}, {v(o+8,4)} offset:{off+64}")
        a(f"ds_write_b32 {v(T)}, {v(T+3)} offset:{off+80}")
        a(f"s_mov_b64 exec, -1")
    a("s_waitcnt lgkmcnt(0)")
    a("s_barrier")
    a(f"v_lshrrev_b32 {v(T)}, 1, v0")
    a(f"v_and_b32 {v(T+1)}, 1, v0")
    a(f"v_mul_u32_u24 {v(T+2)}, 96, {v(T)}")
    R = V_O
    for w in range(4):
        a(f"v_add_u32 {v(T+4+w)}, {w*24576}, {v(T+2)}")
    for w in range(4):
        a(f"ds_read_b32 {v(R+w)}, {v(T+4+w)} offset:80")
    a(f"v_mul_u32_u24 {v(T+3)}, 48, {v(T+1)}")
    for w in range(4):
        a(f"v_add_u32 {v(T+4+w)}, {v(T+4+w)}, {v(T+3)}")
    for w in range(4):
        for k in range(3):
            a(f"ds_read_b128 {v(R+16+12*w+4*k,4)}, {v(T+4+w)} offset:{16*k}")
    a("s_waitcnt lgkmcnt(0)")
    a(f"v_max3_f32 {v(R+4)}, {v(R)}, {v(R+1)}, {v(R+2)}")
    a(f"v_max_f32 {v(R+4)}, {v(R+4)}, {v(R+3)}")
    for w in range(4): a(f"v_sub_f32 {v(R+w)}, {v(R+w)}, {v(R+4)}")
    for w in range(4): a(f"v_exp_f32 {v(R+w)}, {v(R+w)}")
    a("s_nop 0")
    a(f"v_add_f32 {v(R+5)}, {v(R)}, {v(R+1)}")
    a(f"v_add_f32 {v(R+6)}, {v(R+2)}, {v(R+3)}")
    a(f"v_add_f32 {v(R+5)}, {v(R+5)}, {v(R+6)}")
    a(f"v_rcp_f32 {v(R+5)}, {v(R+5)}")
    a("s_nop 0")
    for w in range(4): a(f"v_mul_f32 {v(R+w)}, {v(R+w)}, {v(R+5)}")
    for i in range(12):
        d = R + 16 + i
        a(f"v_mul_f32 {v(d)}, {v(d)}, {v(R)}")
        for w in range(1, 4):
            a(f"v_fmac_f32 {v(d)}, {v(R+16+12*w+i)}, {v(R+w)}")
    for k in range(3):
        a(f"v_cvt_pk_bf16_f32 {v(R+8+2*k)}, {v(R+16+4*k)}, {v(R+17+4*k)}")
        a(f"v_cvt_pk_bf16_f32 {v(R+9+2*k)}, {v(R+18+4*k)}, {v(R+19+4*k)}")
    a(f"s_lshl_b32 {s(S_T0)}, {s(S_QB)}, 8")
    a(f"v_add_u32 {v(T)}, {s(S_T0)}, {v(T)}")
    a(f"v_lshrrev_b32 {v(T+2)}, 4, {v(T)}")
    a(f"v_mul_u32_u24 {v(T+2)}, 20480, {v(T+2)}")
    a(f"v_and_b32 {v(T+3)}, 15, {v(T)}")
    a(f"v_lshl_add_u32 {v(T+2)}, {v(T+3)}, 4, {v(T+2)}")
    a(f"s_mul_i32 {s(S_T0)}, {s(S_HEAD)}, 5")
    a(f"v_mul_u32_u24 {v(T+3)}, 3, {v(T+1)}")
    a(f"v_add_u32 {v(T+3)}, {s(S_T0)}, {v(T+3)}")
    a(f"s_mov_b32 {s(S_T1)}, {WS_O}")
    for k in range(3):
        a(f"v_add_u32 {v(T+4)}, {k}, {v(T+3)}")
        a(f"v_lshrrev_b32 {v(T+5)}, 1, {v(T+4)}")
        a(f"v_lshl_add_u32 {v(T+5)}, {v(T+5)}, 8, {v(T+2)}")
        a(f"v_and_b32 {v(T+4)}, 1, {v(T+4)}")
        a(f"v_lshl_add_u32 {v(T+5)}, {v(T+4)}, 3, {v(T+5)}")
        if k == 2:
            a(f"v_cmp_eq_u32 vcc, 0, {v(T+1)}")
            a("s_nop 0")
            a(f"s_and_saveexec_b64 {s(S_M,2)}, vcc")
        a(f"buffer_store_dwordx2 {v(R+8+2*k,2)}, {v(T+5)}, {s(S_WS,4)}, {s(S_T1)} offen")
    a.label("L_k2_end")
    a("s_endpgm")
    return kd(name, NVGPR)
```

```python
from asmlib import *
from common import *

LAUNCH = "; @launch kernel=k3_kernel grid=(256,1,1) block=(512,1,1) lds=163840"

S_WS, S_X, S_OUT = 4, 8, 12
S_W, S_MB, S_NB = 16, 17, 18
S_A = 20
S_B = 24
S_NS = 29
S_T0, S_T1, S_KO = 30, 31, 32
S_M = 34

V_ACC = 16
V_F = [96, 132, 168]
V_L16 = 204
V_OFF = 205
V_LANE = 206
V_XC = 208
V_T = 216
NVGPR = 224

def gen_k3(a, name="k3_kernel"):
    header(a, name)
    T = V_T; L = V_LANE
    a("s_cmp_ge_u32 s2, 256")
    a("s_cbranch_scc1 L_k3_end")
    a("s_load_dwordx2 s[4:5], s[0:1], 72")
    a("s_load_dwordx2 s[8:9], s[0:1], 0")
    a("s_load_dwordx2 s[12:13], s[0:1], 56")
    a(f"v_and_b32 {v(L)}, 63, v0")
    a(f"v_lshrrev_b32 v1, 6, v0")
    a("s_nop 0")
    a(f"v_readfirstlane_b32 {s(S_W)}, v1")
    a(f"s_and_b32 {s(S_T0)}, s2, 7")
    a(f"s_lshl_b32 {s(S_MB)}, {s(S_T0)}, 2")
    a(f"s_bfe_u32 {s(S_T0)}, s2, 0x20003")
    a(f"s_add_u32 {s(S_MB)}, {s(S_MB)}, {s(S_T0)}")
    a(f"s_lshr_b32 {s(S_NB)}, s2, 5")
    a("s_mov_b32 s6, 0x2000000\ns_mov_b32 s7, 0x20000")
    a(f"s_mov_b32 s10, {X_BYTES}\ns_mov_b32 s11, 0x20000")
    a(f"s_mov_b32 s14, {OUT_BYTES}\ns_mov_b32 s15, 0x20000")
    ls = a.newlabel("k3s"); lj = a.newlabel("k3j")
    a(f"s_cmp_lt_u32 {s(S_W)}, 2")
    a(f"s_cbranch_scc1 {ls}")
    a(f"s_sub_u32 {s(S_T0)}, {s(S_W)}, 2")
    a(f"s_mul_i32 {s(S_T0)}, {s(S_T0)}, {9*1024}")
    a(f"s_mov_b32 {s(S_T1)}, 55296")
    a(f"s_add_u32 {s(S_A)}, {s(S_T0)}, {WS_H}")
    a(f"s_add_u32 {s(S_B)}, {s(S_T0)}, {WS_WD}")
    a(f"s_mov_b32 {s(S_NS)}, 9")
    a(f"s_branch {lj}")
    a.label(ls)
    a(f"s_mul_i32 {s(S_T0)}, {s(S_W)}, {10*1024}")
    a(f"s_mov_b32 {s(S_T1)}, 20480")
    a(f"s_add_u32 {s(S_A)}, {s(S_T0)}, {WS_O}")
    a(f"s_add_u32 {s(S_B)}, {s(S_T0)}, {WS_WO}")
    a(f"s_mov_b32 {s(S_NS)}, 10")
    a.label(lj)
    a(f"s_lshl_b32 {s(S_T0)}, {s(S_MB)}, 2")
    a(f"s_mul_i32 {s(S_T0)}, {s(S_T0)}, {s(S_T1)}")
    a(f"s_add_u32 {s(S_A)}, {s(S_A)}, {s(S_T0)}")
    a(f"s_mul_i32 {s(S_T0)}, {s(S_NB)}, 5")
    a(f"s_mul_i32 {s(S_T0)}, {s(S_T0)}, {s(S_T1)}")
    a(f"s_add_u32 {s(S_B)}, {s(S_B)}, {s(S_T0)}")
    for i in range(1, 4): a(f"s_add_u32 {s(S_A+i)}, {s(S_A+i-1)}, {s(S_T1)}")
    for i in range(1, 5): a(f"s_add_u32 {s(S_B+i)}, {s(S_B+i-1)}, {s(S_T1)}")
    a(f"v_lshlrev_b32 {v(V_L16)}, 4, {v(L)}")
    for i in range(80): a(f"v_mov_b32 {v(V_ACC+i)}, 0")
    for r in range(2):
        a(f"v_add_u32 {v(T)}, {512*r}, v0")
        a(f"v_mul_u32_u24 {v(T+1)}, 52429, {v(T)}")
        a(f"v_lshrrev_b32 {v(T+1)}, 19, {v(T+1)}")
        a(f"v_mul_u32_u24 {v(T+2)}, 10, {v(T+1)}")
        a(f"v_sub_u32 {v(T+2)}, {v(T)}, {v(T+2)}")
        a(f"v_mul_u32_u24 {v(T+3)}, 1280, {v(T+1)}")
        a(f"v_lshl_add_u32 {v(T+3)}, {v(T+2)}, 4, {v(T+3)}")
        a(f"v_mul_u32_u24 {v(T+4+r)}, 320, {v(T+1)}")
        a(f"v_lshl_add_u32 {v(T+4+r)}, {v(T+2)}, 5, {v(T+4+r)}")
        a(f"s_lshl_b32 {s(S_T0)}, {s(S_MB)}, 6")
        a(f"s_mul_i32 {s(S_T0)}, {s(S_T0)}, 1280")
        a(f"s_mul_i32 {s(S_T1)}, {s(S_NB)}, 160")
        a(f"s_add_u32 {s(S_T0)}, {s(S_T0)}, {s(S_T1)}")
        a(f"v_add_u32 {v(T+6+r)}, {s(S_T0)}, {v(T+3)}")
        if r == 1:
            a(f"v_cmp_le_u32 vcc, 640, {v(T)}")
            a(f"v_mov_b32 {v(T+3)}, 0x40000000")
            a("s_nop 0")
            a(f"v_cndmask_b32 {v(T+6+r)}, {v(T+6+r)}, {v(T+3)}, vcc")
    a("s_waitcnt lgkmcnt(0)")
    for r in range(2):
        a(f"buffer_load_dwordx4 {v(V_XC+4*r,4)}, {v(T+6+r)}, {s(S_X,4)}, 0 offen")
    def issue(step):
        st = V_F[step % 3]
        a(f"s_cmp_lt_u32 {step}, {s(S_NS)}")
        a(f"s_cselect_b32 {s(S_KO)}, {step*1024}, 0x40000000")
        a(f"v_add_u32 {v(V_OFF)}, {s(S_KO)}, {v(V_L16)}")
        for i in range(4):
            a(f"buffer_load_dwordx4 {v(st+4*i,4)}, {v(V_OFF)}, {s(S_WS,4)}, {s(S_A+i)} offen")
        for i in range(5):
            a(f"buffer_load_dwordx4 {v(st+16+4*i,4)}, {v(V_OFF)}, {s(S_WS,4)}, {s(S_B+i)} offen")
    NS = 10
    for st in range(3): issue(st)
    for step in range(NS):
        ahead = min(NS-1, step+2) - step
        a(f"s_waitcnt vmcnt({9*ahead})")
        st = V_F[step % 3]
        for nt in range(5):
            for mt in range(4):
                d = v(V_ACC + (mt*5+nt)*4, 4)
                a(f"v_mfma_f32_16x16x32_bf16 {d}, {v(st+16+4*nt,4)}, {v(st+4*mt,4)}, {d}")
        if step + 3 < NS: issue(step+3)
    a.nop(8)
    a(f"v_and_b32 {v(T+8-8)}, 15, {v(L)}") if False else None
    W = V_F[0]
    a(f"v_and_b32 {v(W)}, 15, {v(L)}")
    a(f"v_mul_u32_u24 {v(W)}, 320, {v(W)}")
    a(f"v_lshrrev_b32 {v(W+1)}, 4, {v(L)}")
    a(f"v_lshl_add_u32 {v(W)}, {v(W+1)}, 4, {v(W)}")
    a(f"s_mul_i32 {s(S_T0)}, {s(S_W)}, 20480")
    a(f"v_add_u32 {v(W)}, {s(S_T0)}, {v(W)}")
    for mt in range(4):
        for nt in range(5):
            a(f"ds_write_b128 {v(W)}, {v(V_ACC+(mt*5+nt)*4,4)} offset:{mt*16*320 + nt*64}")
    a("s_waitcnt lgkmcnt(0)")
    a("s_barrier")
    for r in range(2):
        if r == 1:
            a(f"v_cmp_gt_u32 vcc, 128, v0")
            a("s_nop 0")
            a(f"s_and_saveexec_b64 {s(S_M,2)}, vcc")
            a("s_cbranch_execz L_k3_end")
        ad = [V_ACC + 64 + i for i in range(8)]
        for w in range(8):
            a(f"v_add_u32 {v(ad[w])}, {w*20480}, {v(T+4+r)}")
        for w in range(8):
            a(f"ds_read_b128 {v(V_ACC+8*w,4)}, {v(ad[w])}")
            a(f"ds_read_b128 {v(V_ACC+8*w+4,4)}, {v(ad[w])} offset:16")
        a("s_waitcnt lgkmcnt(0)")
        S = V_ACC; F = V_ACC + 16
        for i in range(8): a(f"v_add_f32 {v(S+i)}, {v(S+i)}, {v(S+8+i)}")
        for w in range(3, 8):
            for i in range(8): a(f"v_add_f32 {v(F+i)}, {v(F+i)}, {v(V_ACC+8*w+i)}")
        E = V_F[0]
        for i in range(8): a(f"v_mul_f32 {v(E+i)}, {fhex(-LOG2E)}, {v(F+i)}")
        for i in range(8): a(f"v_exp_f32 {v(E+i)}, {v(E+i)}")
        a("s_nop 0")
        for i in range(8): a(f"v_add_f32 {v(E+i)}, 1.0, {v(E+i)}")
        for i in range(8): a(f"v_rcp_f32 {v(E+i)}, {v(E+i)}")
        a("s_nop 0")
        for i in range(8): a(f"v_mul_f32 {v(F+i)}, {v(F+i)}, {v(E+i)}")
        for i in range(8): a(f"v_mul_f32 {v(S+i)}, {v(S+i)}, {v(F+i)}")
        X = V_XC + 4*r
        a("s_waitcnt vmcnt(0)")
        for i in range(4):
            a(f"v_lshlrev_b32 {v(E+2*i)}, 16, {v(X+i)}")
            a(f"v_and_b32 {v(E+2*i+1)}, 0xffff0000, {v(X+i)}")
        for i in range(8): a(f"v_add_f32 {v(S+i)}, {v(S+i)}, {v(E+i)}")
        for i in range(4): a(f"v_cvt_pk_bf16_f32 {v(E+8+i+4*r)}, {v(S+2*i)}, {v(S+2*i+1)}")
        a(f"buffer_store_dwordx4 {v(E+8+4*r,4)}, {v(T+6+r)}, {s(S_OUT,4)}, 0 offen")
    a.label("L_k3_end")
    a("s_endpgm")
    return kd(name, NVGPR)
```

```python
import sys
sys.path.insert(0, "gen")
from asmlib import *
from common import *
import importlib

HEAD = """; recurrent_scan__mha_block__glu_gated_geglu__prompt : out = x + MHA(LN(x)) * silu(GEGLU_FFN(LN(x)))
"""

def build(kernels, path, launches):
    a = Asm()
    kds = []
    allp = []
    for fn, name in kernels:
        start = len(a.lines)
        kds.append(fn(a, name))
        allp += check(a.lines[start:], name)
    txt = HEAD
    for l in launches: txt += l + "\n"
    txt += '.amdgcn_target "amdgcn-amd-amdhsa--gfx950"\n.text\n'
    txt += a.text()
    txt += '.section .rodata,"a"\n' + "".join(kds)
    open(path, "w").write(txt)
    return allp

if __name__ == "__main__":
    import k1
    ks = [(k1.gen_k1, "k1_kernel")]
    ls = ["; @launch kernel=k1_kernel grid=(256,1,1) block=(512,1,1) lds=163840"]
    try:
        import k2
        ks.append((k2.gen_k2, "k2_kernel"))
        ls.append(k2.LAUNCH)
    except ImportError: pass
    try:
        import k3
        ks.append((k3.gen_k3, "k3_kernel"))
        ls.append(k3.LAUNCH)
    except ImportError: pass
    out = sys.argv[1] if len(sys.argv) > 1 else "out.s"
    p = build(ks, out, ls)
    print("\n".join(p) if p else "no hazards flagged")
```

```python
WS_Q  = 0x000000
WS_K  = 0x300000
WS_V  = 0x580000
WS_H  = 0x800000
WS_O  = 0xF00000
WS_WO = 0x1200000
WS_WD = 0x1300000
WS_G  = 0x1600000
WS_SIZE = 0x10000000
X_BYTES = 2048*640*2
WQKV_BYTES = 640*1920*2
WO_BYTES = 640*640*2
WG_BYTES = 640*1728*2
WD_BYTES = 1728*640*2
OUT_BYTES = 2048*640*2
LOG2E = 1.4426950408889634
QSCALE = (20.0 ** -0.5) * LOG2E
import struct
def f2u(x):
    return struct.unpack("<I", struct.pack("<f", x))[0]
def fhex(x):
    return "0x%08x" % f2u(x)

def kd(name, vgpr, sgpr=96):
    acc = (vgpr + 3) // 4 * 4
    return f""".p2align 6
.amdhsa_kernel {name}
  .amdhsa_next_free_vgpr {vgpr}
  .amdhsa_next_free_sgpr {sgpr}
  .amdhsa_accum_offset {acc}
  .amdhsa_group_segment_fixed_size 0
  .amdhsa_kernarg_size 80
  .amdhsa_user_sgpr_count 2
  .amdhsa_user_sgpr_kernarg_segment_ptr 1
  .amdhsa_system_sgpr_workgroup_id_x 1
.end_amdhsa_kernel
"""
def header(a, name):
    a(f".globl {name}")
    a(f".p2align 8")
    a(f".type {name},@function")
    a.label(name)

import os
PROF = os.environ.get("PROF", "0") == "1"
WS_PROF = 0x1800000
S_STAMP = 64
def stamp(a, i):
    if PROF:
        a(f"s_memrealtime s[{S_STAMP+2*i}:{S_STAMP+2*i+1}]")
def stamp_cyc(a, i):
    if PROF:
        a(f"s_memtime s[{S_STAMP+2*i}:{S_STAMP+2*i+1}]")
def stamp_flush(a, kidx, srd, wave_sgpr, vtmp):
    if not PROF: return
    a("s_waitcnt lgkmcnt(0)")
    a(f"s_lshl_b32 s80, s2, 3")
    a(f"s_add_u32 s80, s80, s{wave_sgpr}")
    a(f"s_lshl_b32 s80, s80, 6")
    a(f"s_add_u32 s80, s80, {WS_PROF + kidx*0x40000}")
    a(f"s_mov_b64 exec, 1")
    for i in range(16):
        a(f"v_mov_b32 v{vtmp+i}, s{S_STAMP+i}")
    a(f"v_mov_b32 v{vtmp+16}, 0")
    for i in range(4):
        a(f"buffer_store_dwordx4 v[{vtmp+4*i}:{vtmp+4*i+3}], v{vtmp+16}, s[{srd}:{srd+3}], s80 offen offset:{16*i}")
    a("s_waitcnt vmcnt(0)")

DBG = os.environ.get("DBG", "0") == "1"
def dbg_begin(a):
    if DBG:
        a("s_memrealtime s[84:85]")
        a("s_load_dwordx2 s[88:89], s[0:1], 64")
def dbg_end(a, kidx, vtmp):
    if DBG:
        a("s_waitcnt vmcnt(0) lgkmcnt(0)")
        a("s_memrealtime s[86:87]")
        a("s_waitcnt lgkmcnt(0)")
        a(f"s_sub_u32 s88, s88, {512*kidx}")
        a("s_subb_u32 s89, s89, 0")
        a("s_mov_b32 s90, 256\ns_mov_b32 s91, 0x20000")
        a("s_not_b32 s84, s84")
        a("s_mov_b64 exec, 1")
        a(f"v_mov_b32 v{vtmp}, s84\nv_mov_b32 v{vtmp+1}, s86\nv_mov_b32 v{vtmp+2}, {8*kidx}")
        a(f"buffer_atomic_umax v{vtmp}, v{vtmp+2}, s[88:91], 0 offen")
        a(f"buffer_atomic_umax v{vtmp+1}, v{vtmp+2}, s[88:91], 0 offen offset:4")
        a("s_waitcnt vmcnt(0)")
```

```python
from asmlib import *
from common import *

A_RING = 0
B_RING = 98304
B_SLOT = 12288

S_X, S_B, S_WS = 4, 8, 12
S_W, S_WM, S_WN, S_MB, S_NB = 32, 33, 34, 35, 36
S_T = 37
S_BW = 38
S_BOFF = 39
S_BM0 = 40
S_AW = 41
S_AOFF = 42
S_AT = 43
S_AM0 = 44
S_ONES = 45
S_TMP = 46
S_TMP2 = 47
S_AR = 48
S_BROW = 49
S_H4 = 50
S_SEC = 51
S_E0, S_E1, S_E2, S_E3 = 52, 53, 54, 55

V_ACC = 16
V_X = [112, 128]
V_WF = [144, 168]
V_AB = [192, 193]
V_AC = 194
V_BB = [195, 196]
V_BC = [197, 198]
V_DM = [199, 200, 201]
V_XS1 = 202
V_XS2 = 206
V_CS = 210
V_LANE = 216
V_T0 = 217
NVGPR = 224

def acc(f, j, NT):
    return V_ACC + (f * NT + j) * 4

def main_loop(a, NT, RS, upoff, nm):
    def reads(setn, vA, vB):
        r = []
        for f in range(4):
            r.append(f"ds_read_b128 {v(V_X[setn]+4*f,4)}, {v(vA)} offset:{f*2048}")
        for j in range(NT):
            base, jo = upoff[j]
            vb = vB[jo & 1]
            off = base + 32 * jo
            r.append(f"ds_read_b64_tr_b16 {v(V_WF[setn]+4*j,2)}, {v(vb)} offset:{off}")
            r.append(f"ds_read_b64_tr_b16 {v(V_WF[setn]+4*j+2,2)}, {v(vb)} offset:{off + 4*RS}")
        return r
    def mfmas(setn):
        r = []
        for j in range(NT):
            for f in range(4):
                d = v(acc(f, j, NT), 4)
                r.append(f"v_mfma_f32_16x16x32_bf16 {d}, {v(V_WF[setn]+4*j,4)}, {v(V_X[setn]+4*f,4)}, {d}")
        return r
    def xstats(setn):
        for reg in range(4):
            for f in range(4):
                x = v(V_X[setn] + 4*f + reg)
                a(f"v_dot2c_f32_bf16 {v(V_XS2+f)}, {x}, {x}")
                a(f"v_dot2c_f32_bf16 {v(V_XS1+f)}, {s(S_ONES)}, {x}")
    def cstats(setn):
        for reg in range(4):
            for j in range(NT):
                a(f"v_dot2c_f32_bf16 {v(V_CS+j)}, {s(S_ONES)}, {v(V_WF[setn]+4*j+reg)}")
    def dma_B():
        a(f"s_add_u32 {s(S_TMP)}, {s(S_BM0)}, {s(S_BW)}")
        for i in range(3):
            a(f"s_add_u32 m0, {s(S_TMP)}, {i*1024}")
            a("s_nop 0")
            a(f"buffer_load_dwordx4 {v(V_DM[i])}, {s(S_B,4)}, {s(S_BOFF)} offen lds")
        a(f"s_add_u32 {s(S_BOFF)}, {s(S_BOFF)}, {s(S_BROW)}")
    def dma_A(hf):
        a(f"s_add_u32 {s(S_TMP)}, {s(S_AM0)}, {s(S_AW)}")
        a(f"s_add_u32 {s(S_TMP2)}, {s(S_AOFF)}, {s(S_AT)}")
        for i in range(4):
            a(f"s_add_u32 m0, {s(S_TMP)}, {hf*16384 + i*1024}")
            a(f"s_add_u32 {s(S_E0)}, {s(S_TMP2)}, {(hf*128 + 8*i)*1280}")
            a(f"buffer_load_dwordx4 {v(V_DM[i&1])}, {s(S_X,4)}, {s(S_E0)} offen lds")
    def advance_A_write():
        a(f"s_add_u32 {s(S_AT)}, {s(S_AT)}, 128")
        a(f"s_cmp_ge_u32 {s(S_AT)}, 1280")
        a(f"s_cselect_b32 {s(S_AT)}, 0x40000000, {s(S_AT)}")
        a(f"s_add_u32 {s(S_AW)}, {s(S_AW)}, 32768")
        a(f"s_cmp_eq_u32 {s(S_AW)}, 98304")
        a(f"s_cselect_b32 {s(S_AW)}, 0, {s(S_AW)}")
    def next_B_slot():
        a(f"s_add_u32 {s(S_BW)}, {s(S_BW)}, {B_SLOT}")
        a(f"s_cmp_eq_u32 {s(S_BW)}, {5*B_SLOT}")
        a(f"s_cselect_b32 {s(S_BW)}, 0, {s(S_BW)}")

    L = f"L_{nm}"
    lb = a.newlabel("pB"); lj = a.newlabel("pJ")
    a(f"s_cmp_eq_u32 {s(S_WN)}, 0")
    a(f"s_cbranch_scc1 {lb}")
    a(f"s_mov_b32 {s(S_AW)}, 0")
    a(f"s_mov_b32 {s(S_AT)}, 0")
    dma_A(0); dma_A(1); advance_A_write()
    dma_A(0); dma_A(1); advance_A_write()
    dma_A(0)
    a("s_waitcnt vmcnt(12)")
    a(f"s_branch {lj}")
    a.label(lb)
    a(f"s_mov_b32 {s(S_BW)}, 0")
    for k in range(5):
        dma_B(); next_B_slot()
    a("s_waitcnt vmcnt(12)")
    a.label(lj)
    a(f"s_mov_b32 {s(S_BW)}, 0")
    stamp(a, 1)
    a("s_barrier")
    stamp(a, 2)
    for ln in reads(0, V_AB[0], V_BB): a(ln)
    a(f"s_mov_b32 {s(S_AR)}, 0")
    a(f"s_mov_b32 {s(S_T)}, 0")
    a(f"s_mov_b32 {s(S_H4)}, 0")
    a.label(L + "_loop")
    for ks in range(2):
        cur, nxt = ks, ks ^ 1
        lb = a.newlabel("dB"); lj = a.newlabel("dJ")
        a(f"s_cmp_eq_u32 {s(S_WN)}, 0")
        a(f"s_cbranch_scc1 {lb}")
        if ks == 1:
            a("s_waitcnt vmcnt(8) lgkmcnt(0)")
        else:
            a("s_waitcnt lgkmcnt(0)")
        a("s_barrier")
        if ks == 0:
            dma_A(1); advance_A_write()
        else:
            dma_A(0)
        a(f"s_branch {lj}")
        a.label(lb)
        a("s_waitcnt vmcnt(9) lgkmcnt(0)")
        a("s_barrier")
        dma_B()
        a.label(lj)
        next_B_slot()
        if ks == 1:
            a(f"s_add_u32 {s(S_AR)}, {s(S_AR)}, 32768")
            a(f"s_cmp_eq_u32 {s(S_AR)}, 98304")
            a(f"s_cselect_b32 {s(S_AR)}, 0, {s(S_AR)}")
        a(f"v_add_u32 {v(V_AC)}, {s(S_AR)}, {v(V_AB[nxt])}")
        a(f"v_add_u32 {v(V_BC[0])}, {s(S_BW)}, {v(V_BB[0])}")
        a(f"v_add_u32 {v(V_BC[1])}, {s(S_BW)}, {v(V_BB[1])}")
        rd = reads(nxt, V_AC, V_BC)
        mf = mfmas(cur)
        k = 0
        for i, m in enumerate(mf):
            a(m)
            if k < len(rd):
                a(rd[k]); k += 1
        assert k == len(rd)
        ls = a.newlabel("xs")
        a(f"s_cmp_lg_u32 {s(S_WN)}, {ks}")
        a(f"s_cbranch_scc1 {ls}")
        xstats(cur)
        a.label(ls)
        lc = a.newlabel("cs")
        a(f"s_cmp_lg_u32 {s(S_H4)}, {s(S_WM)}")
        a(f"s_cbranch_scc1 {lc}")
        cstats(cur)
        a.label(lc)
        a(f"s_add_u32 {s(S_H4)}, {s(S_H4)}, 1")
        a(f"s_and_b32 {s(S_H4)}, {s(S_H4)}, 3")
    a(f"s_add_u32 {s(S_T)}, {s(S_T)}, 1")
    a(f"s_cmp_lt_u32 {s(S_T)}, 10")
    a(f"s_cbranch_scc1 {L}_loop")
    a("s_waitcnt vmcnt(0) lgkmcnt(0)")
    a("s_barrier")
    stamp(a, 3)

def stats_exchange(a, NT, gtype):
    T = V_T0
    a(f"v_and_b32 {v(T)}, 15, {v(V_LANE)}")
    a(f"v_lshrrev_b32 {v(T+1)}, 4, {v(V_LANE)}")
    a(f"s_lshl_b32 {s(S_TMP)}, {s(S_WM)}, 11")
    a(f"s_lshl_b32 {s(S_TMP2)}, {s(S_WN)}, 4")
    a(f"s_add_u32 {s(S_TMP)}, {s(S_TMP)}, {s(S_TMP2)}")
    a(f"v_lshlrev_b32 {v(T+2)}, 5, {v(T)}")
    a(f"v_lshl_add_u32 {v(T+2)}, {v(T+1)}, 2, {v(T+2)}")
    a(f"v_add_u32 {v(T+2)}, {s(S_TMP)}, {v(T+2)}")
    for f in range(4):
        a(f"ds_write_b32 {v(T+2)}, {v(V_XS1+f)} offset:{f*512}")
        a(f"ds_write_b32 {v(T+2)}, {v(V_XS2+f)} offset:{8192 + f*512}")
    a(f"s_mul_i32 {s(S_TMP)}, {s(S_WN)}, {16*NT*64}")
    a(f"s_lshl_b32 {s(S_TMP2)}, {s(S_WM)}, 4")
    a(f"s_add_u32 {s(S_TMP)}, {s(S_TMP)}, {s(S_TMP2)}")
    a(f"v_lshlrev_b32 {v(T+3)}, 6, {v(T)}")
    a(f"v_lshl_add_u32 {v(T+3)}, {v(T+1)}, 2, {v(T+3)}")
    a(f"v_add_u32 {v(T+3)}, {s(S_TMP)}, {v(T+3)}")
    for j in range(NT):
        a(f"ds_write_b32 {v(T+3)}, {v(V_CS+j)} offset:{16384 + j*1024}")
    a("s_waitcnt lgkmcnt(0)")
    a("s_barrier")
    lcol = a.newlabel("rcol"); ldone = a.newlabel("rdone")
    R = V_X[0]
    a(f"s_cmp_ge_u32 {s(S_W)}, 4")
    a(f"s_cbranch_scc1 {lcol}")
    a(f"v_lshlrev_b32 {v(T)}, 5, v0")
    a(f"ds_read_b128 {v(R,4)}, {v(T)}")
    a(f"ds_read_b128 {v(R+4,4)}, {v(T)} offset:16")
    a(f"ds_read_b128 {v(R+8,4)}, {v(T)} offset:8192")
    a(f"ds_read_b128 {v(R+12,4)}, {v(T)} offset:8208")
    a("s_waitcnt lgkmcnt(0)")
    for b in (R, R+8):
        for i in range(4): a(f"v_add_f32 {v(b+i)}, {v(b+i)}, {v(b+4+i)}")
        a(f"v_add_f32 {v(b)}, {v(b)}, {v(b+1)}")
        a(f"v_add_f32 {v(b+2)}, {v(b+2)}, {v(b+3)}")
        a(f"v_add_f32 {v(b)}, {v(b)}, {v(b+2)}")
    a(f"v_mul_f32 {v(R)}, {fhex(1.0/640)}, {v(R)}")
    a(f"v_mul_f32 {v(R+8)}, {fhex(1.0/640)}, {v(R+8)}")
    a(f"v_fma_f32 {v(R+8)}, -{v(R)}, {v(R)}, {v(R+8)}")
    a(f"v_max_f32 {v(R+8)}, 0, {v(R+8)}")
    a(f"v_add_f32 {v(R+8)}, {fhex(1e-5)}, {v(R+8)}")
    a(f"v_rsq_f32 {v(R+9)}, {v(R+8)}")
    a(f"v_sub_f32 {v(R+4)}, 0, {v(R)}")
    if gtype:
        KG = 2.0 * 0.7978845608028654 * LOG2E
        a(f"v_mul_f32 {v(R+5)}, {fhex(-KG)}, {v(R+9)}")
        a(f"v_mul_f32 {v(R+6)}, {v(R+9)}, {v(R+9)}")
        a(f"v_mul_f32 {v(R+6)}, {v(R+6)}, {v(R+5)}")
        a(f"v_mul_f32 {v(R+6)}, {fhex(0.044715)}, {v(R+6)}")
        a(f"v_mov_b32 {v(R+7)}, {v(R+8)}")
    else:
        a(f"v_mul_f32 {v(R+5)}, {s(S_E3)}, {v(R+9)}")
        a(f"v_mov_b32 {v(R+6)}, 0")
        a(f"v_mov_b32 {v(R+7)}, 0")
    a(f"v_lshlrev_b32 {v(T)}, 4, v0")
    a(f"ds_write_b128 {v(T)}, {v(R+4,4)} offset:32768")
    a(f"s_branch {ldone}")
    a.label(lcol)
    a(f"v_subrev_u32 {v(T)}, 256, v0")
    a(f"v_lshlrev_b32 {v(T+1)}, 6, {v(T)}")
    for q in range(4):
        a(f"ds_read_b128 {v(R+4*q,4)}, {v(T+1)} offset:{16384 + 16*q}")
    a("s_waitcnt lgkmcnt(0)")
    for i in range(4): a(f"v_add_f32 {v(R+i)}, {v(R+i)}, {v(R+4+i)}")
    for i in range(4): a(f"v_add_f32 {v(R+8+i)}, {v(R+8+i)}, {v(R+12+i)}")
    for i in range(4): a(f"v_add_f32 {v(R+i)}, {v(R+i)}, {v(R+8+i)}")
    a(f"v_add_f32 {v(R)}, {v(R)}, {v(R+1)}")
    a(f"v_add_f32 {v(R+2)}, {v(R+2)}, {v(R+3)}")
    a(f"v_add_f32 {v(R)}, {v(R)}, {v(R+2)}")
    a(f"v_lshlrev_b32 {v(T)}, 2, {v(T)}")
    a(f"ds_write_b32 {v(T)}, {v(R)} offset:40960")
    a.label(ldone)
    a("s_waitcnt lgkmcnt(0)")
    a("s_barrier")
    a(f"v_and_b32 {v(T)}, 15, {v(V_LANE)}")
    a(f"v_lshlrev_b32 {v(T)}, 4, {v(T)}")
    a(f"s_lshl_b32 {s(S_TMP)}, {s(S_WM)}, 10")
    a(f"v_add_u32 {v(T)}, {s(S_TMP)}, {v(T)}")
    for f in range(4):
        a(f"ds_read_b128 {v(V_X[0]+4*f,4)}, {v(T)} offset:{32768 + f*256}")
    a(f"v_lshrrev_b32 {v(T+1)}, 4, {v(V_LANE)}")
    a(f"v_lshlrev_b32 {v(T+1)}, 4, {v(T+1)}")
    a(f"s_mul_i32 {s(S_TMP)}, {s(S_WN)}, {16*NT*4}")
    a(f"v_add_u32 {v(T+1)}, {s(S_TMP)}, {v(T+1)}")
    for j in range(NT):
        a(f"ds_read_b128 {v(V_WF[0]+4*j,4)}, {v(T+1)} offset:{40960 + j*64}")
    a("s_waitcnt lgkmcnt(0)")

def setup_common(a):
    a(f"v_and_b32 {v(V_LANE)}, 63, v0")
    a(f"v_lshrrev_b32 v1, 6, v0")
    a("s_nop 0")
    a(f"v_readfirstlane_b32 {s(S_W)}, v1")
    a("s_nop 0")
    a(f"s_and_b32 {s(S_WM)}, {s(S_W)}, 3")
    a(f"s_lshr_b32 {s(S_WN)}, {s(S_W)}, 2")

def setup_gemm(a, NT, RS, CPR, seg0_mul, wrowbytes, gtype):
    T = V_T0
    L = V_LANE
    a(f"s_mov_b32 {s(S_ONES)}, 0x3f803f80")
    a(f"s_mov_b32 {s(S_BROW)}, {32*wrowbytes}")
    for i in range(4*NT*4): a(f"v_mov_b32 {v(V_ACC+i)}, 0")
    for i in range(14): a(f"v_mov_b32 {v(V_XS1+i)}, 0")
    for i in range(3): a(f"v_mov_b32 {v(V_DM[i])}, 0")
    for r in (S_BOFF, S_BM0, S_AW, S_AOFF, S_AT, S_AM0, S_BW): a(f"s_mov_b32 {s(r)}, 0")
    a(f"v_and_b32 {v(T)}, 15, {v(L)}")
    a(f"v_lshrrev_b32 {v(T+1)}, 4, {v(L)}")
    a(f"v_lshrrev_b32 {v(T+2)}, 1, {v(T)}")
    a(f"v_xor_b32 {v(T+2)}, {v(T+2)}, {v(T+1)}")
    a(f"v_lshlrev_b32 {v(T+2)}, 4, {v(T+2)}")
    a(f"v_lshl_add_u32 {v(T+2)}, {v(T)}, 7, {v(T+2)}")
    a(f"s_lshl_b32 {s(S_TMP)}, {s(S_WM)}, 13")
    a(f"v_add_u32 {v(V_AB[0])}, {s(S_TMP)}, {v(T+2)}")
    a(f"v_xor_b32 {v(V_AB[1])}, 64, {v(V_AB[0])}")
    a(f"v_lshrrev_b32 {v(T+2)}, 2, {v(T)}")
    a(f"v_lshl_add_u32 {v(T+2)}, {v(T+1)}, 3, {v(T+2)}")
    a(f"v_mul_u32_u24 {v(T+2)}, {RS}, {v(T+2)}")
    a(f"v_and_b32 {v(T+3)}, 3, {v(L)}")
    a(f"v_lshl_add_u32 {v(T+2)}, {v(T+3)}, 3, {v(T+2)}")
    a(f"s_mul_i32 {s(S_TMP)}, {s(S_WN)}, {seg0_mul}")
    a(f"s_lshl_b32 {s(S_TMP2)}, {s(S_TMP)}, 5")
    a(f"s_add_u32 {s(S_TMP2)}, {s(S_TMP2)}, {B_RING}")
    a(f"v_add_u32 {v(T+2)}, {s(S_TMP2)}, {v(T+2)}")
    a(f"v_and_b32 {v(T+3)}, 1, {v(T+1)}")
    a(f"v_lshlrev_b32 {v(T+3)}, 5, {v(T+3)}")
    a(f"v_add_u32 {v(T+4)}, {v(T+2)}, {v(T+3)}")
    a(f"v_sub_u32 {v(T+5)}, {v(T+2)}, {v(T+3)}")
    a(f"s_and_b32 {s(S_TMP)}, {s(S_TMP)}, 1")
    a(f"s_cmp_eq_u32 {s(S_TMP)}, 0")
    a(f"s_cselect_b64 vcc, -1, 0")
    a(f"v_cndmask_b32 {v(V_BB[0])}, {v(T+5)}, {v(T+4)}, vcc")
    a(f"v_cndmask_b32 {v(V_BB[1])}, {v(T+4)}, {v(T+5)}, vcc")
    lb = a.newlabel("sB"); lj = a.newlabel("sJ")
    a(f"s_cmp_eq_u32 {s(S_WN)}, 0")
    a(f"s_cbranch_scc1 {lb}")
    a(f"v_lshrrev_b32 {v(T)}, 3, {v(L)}")
    a(f"v_mul_u32_u24 {v(T)}, 1280, {v(T)}")
    a(f"v_and_b32 {v(T+2)}, 7, {v(L)}")
    a(f"v_xor_b32 {v(T+2)}, {v(T+2)}, {v(T+1)}")
    a(f"v_lshl_add_u32 {v(V_DM[0])}, {v(T+2)}, 4, {v(T)}")
    a(f"v_xor_b32 {v(V_DM[1])}, 64, {v(V_DM[0])}")
    a(f"s_lshl_b32 {s(S_TMP)}, {s(S_MB)}, 8")
    a(f"s_lshl_b32 {s(S_TMP2)}, {s(S_WM)}, 5")
    a(f"s_add_u32 {s(S_TMP)}, {s(S_TMP)}, {s(S_TMP2)}")
    a(f"s_mul_i32 {s(S_AOFF)}, {s(S_TMP)}, 1280")
    a(f"s_lshl_b32 {s(S_AM0)}, {s(S_WM)}, 12")
    a(f"s_branch {lj}")
    a.label(lb)
    if gtype:
        a(f"s_and_b32 {s(S_TMP)}, {s(S_W)}, 1")
        a(f"s_mul_i32 {s(S_TMP)}, {s(S_TMP)}, 3")
        a(f"s_lshr_b32 {s(S_TMP2)}, {s(S_W)}, 1")
        a(f"s_mul_i32 {s(S_TMP2)}, {s(S_TMP2)}, 6144")
    else:
        a(f"s_mul_i32 {s(S_TMP)}, {s(S_W)}, 3")
        a(f"s_mov_b32 {s(S_TMP2)}, 0")
    a(f"s_lshl_b32 {s(S_BM0)}, {s(S_TMP)}, 10")
    a(f"s_add_u32 {s(S_BM0)}, {s(S_BM0)}, {s(S_TMP2)}")
    a(f"s_add_u32 {s(S_BM0)}, {s(S_BM0)}, {B_RING}")
    a(f"s_lshl_b32 {s(S_TMP)}, {s(S_TMP)}, 6")
    magic, sh = {12: (43691, 19), 20: (52429, 20)}[CPR]
    colbytes = 192 if gtype else 320
    a(f"s_mul_i32 {s(S_TMP2)}, {s(S_NB)}, {colbytes}")
    for i in range(3):
        a(f"v_add_u32 {v(T)}, {s(S_TMP)}, {v(L)}")
        if i: a(f"v_add_u32 {v(T)}, {64*i}, {v(T)}")
        a(f"v_mul_u32_u24 {v(T+2)}, {magic}, {v(T)}")
        a(f"v_lshrrev_b32 {v(T+2)}, {sh}, {v(T+2)}")
        a(f"v_mul_u32_u24 {v(T+3)}, {CPR}, {v(T+2)}")
        a(f"v_sub_u32 {v(T+3)}, {v(T)}, {v(T+3)}")
        a(f"v_lshrrev_b32 {v(T+4)}, 3, {v(T+2)}")
        a(f"v_and_b32 {v(T+4)}, 1, {v(T+4)}")
        a(f"v_lshlrev_b32 {v(T+4)}, 1, {v(T+4)}")
        a(f"v_xor_b32 {v(T+3)}, {v(T+3)}, {v(T+4)}")
        a(f"v_mul_u32_u24 {v(T+2)}, {wrowbytes}, {v(T+2)}")
        a(f"v_lshl_add_u32 {v(T+2)}, {v(T+3)}, 4, {v(T+2)}")
        a(f"v_add_u32 {v(V_DM[i])}, {s(S_TMP2)}, {v(T+2)}")
        if not gtype:
            a(f"v_cmp_le_u32 vcc, 640, {v(T)}")
            a(f"v_mov_b32 {v(T+5)}, 0x40000000")
            a("s_nop 0")
            a(f"v_cndmask_b32 {v(V_DM[i])}, {v(V_DM[i])}, {v(T+5)}, vcc")
    a(f"s_mov_b32 {s(S_BOFF)}, 0")
    a.label(lj)

def epilogue_G(a):
    NT = 6
    T = V_T0
    L = V_LANE
    TS = V_X[0]; CS = V_WF[0]
    W = V_X[1]
    a(f"v_lshrrev_b32 {v(T)}, 5, {v(L)}")
    a(f"v_lshlrev_b32 {v(T)}, 8, {v(T)}")
    a(f"v_and_b32 {v(T+1)}, 15, {v(L)}")
    a(f"v_lshl_add_u32 {v(T)}, {v(T+1)}, 4, {v(T)}")
    a(f"v_bfe_u32 {v(T+1)}, {v(L)}, 4, 1")
    a(f"v_lshl_add_u32 {v(T)}, {v(T+1)}, 3, {v(T)}")
    a(f"s_lshl_b32 {s(S_TMP)}, {s(S_MB)}, 4")
    a(f"s_lshl_b32 {s(S_TMP2)}, {s(S_WM)}, 2")
    a(f"s_add_u32 {s(S_TMP)}, {s(S_TMP)}, {s(S_TMP2)}")
    a(f"s_mul_i32 {s(S_E0)}, {s(S_TMP)}, 55296")
    a(f"s_mul_i32 {s(S_TMP)}, {s(S_NB)}, 6")
    a(f"s_mul_i32 {s(S_TMP2)}, {s(S_WN)}, 3")
    a(f"s_add_u32 {s(S_TMP)}, {s(S_TMP)}, {s(S_TMP2)}")
    a(f"s_lshl_b32 {s(S_TMP)}, {s(S_TMP)}, 9")
    a(f"s_add_u32 {s(S_E0)}, {s(S_E0)}, {s(S_TMP)}")
    a(f"s_add_u32 {s(S_E0)}, {s(S_E0)}, {WS_H}")
    outregs = [V_WF[1] + 2*i for i in range(12)]
    k = 0
    for jj in range(3):
        for f in range(4):
            G = acc(f, jj, NT); U = acc(f, jj + 3, NT)
            ts = TS + 4*f
            cg = CS + 4*jj; cu = CS + 4*(jj+3)
            o = outregs[k % 12]; k += 1
            bc = "op_sel:[0,0,0] op_sel_hi:[0,1,1]"
            for p in range(2):
                g2 = v(G+2*p, 2); u2 = v(U+2*p, 2)
                w0 = W + 8*p
                a(f"v_pk_fma_f32 {g2}, {v(ts,2)}, {v(cg+2*p,2)}, {g2} op_sel:[0,0,0] op_sel_hi:[0,1,1]")
                a(f"v_pk_fma_f32 {u2}, {v(ts,2)}, {v(cu+2*p,2)}, {u2} op_sel:[0,0,0] op_sel_hi:[0,1,1]")
            for p in range(2):
                g2 = v(G+2*p, 2); w0 = W + 8*p
                a(f"v_pk_mul_f32 {v(w0,2)}, {g2}, {g2}")
            for p in range(2):
                g2 = v(G+2*p, 2); w0 = W + 8*p
                a(f"v_pk_fma_f32 {v(w0,2)}, {v(ts+2,2)}, {v(w0,2)}, {v(ts,2)} op_sel:[0,0,1] op_sel_hi:[0,1,1]")
            for p in range(2):
                g2 = v(G+2*p, 2); w0 = W + 8*p
                a(f"v_pk_mul_f32 {v(w0,2)}, {v(w0,2)}, {g2}")
            for p in range(2):
                w0 = W + 8*p
                a(f"v_exp_f32 {v(w0)}, {v(w0)}")
                a(f"v_exp_f32 {v(w0+1)}, {v(w0+1)}")
            for p in range(2):
                g2 = v(G+2*p, 2); u2 = v(U+2*p, 2); w0 = W + 8*p
                a(f"v_pk_mul_f32 {v(w0+2,2)}, {g2}, {u2}")
            for p in range(2):
                w0 = W + 8*p
                a(f"v_pk_fma_f32 {v(w0,2)}, {v(ts+2,2)}, {v(w0,2)}, {v(ts+2,2)} op_sel:[1,0,1] op_sel_hi:[1,1,1]")
            for p in range(2):
                w0 = W + 8*p
                a(f"v_rcp_f32 {v(w0)}, {v(w0)}")
                a(f"v_rcp_f32 {v(w0+1)}, {v(w0+1)}")
            a("s_nop 0")
            for p in range(2):
                w0 = W + 8*p
                a(f"v_pk_mul_f32 {v(w0,2)}, {v(w0,2)}, {v(w0+2,2)}")
            for p in range(2):
                w0 = W + 8*p
                a(f"v_cvt_pk_bf16_f32 {v(o+p)}, {v(w0)}, {v(w0+1)}")
            a(f"s_add_u32 {s(S_TMP)}, {s(S_E0)}, {f*55296 + jj*512}")
            a(f"buffer_store_dwordx2 {v(o,2)}, {v(T)}, {s(S_WS,4)}, {s(S_TMP)} offen")

def epilogue_Q(a):
    NT = 5
    T = V_T0
    L = V_LANE
    TS = V_X[0]; CS = V_WF[0]
    OFF = V_X[1]
    YB = V_WF[1]
    lK = a.newlabel("eK"); lV = a.newlabel("eV"); lEnd = a.newlabel("eEnd")
    def compute_y(f, j, o):
        A_ = acc(f, j, NT); ts = TS + 4*f; cs = CS + 4*j
        for p in range(2):
            a2 = v(A_+2*p, 2)
            a(f"v_pk_fma_f32 {a2}, {v(ts,2)}, {v(cs+2*p,2)}, {a2} op_sel:[0,0,0] op_sel_hi:[0,1,1]")
        for p in range(2):
            a2 = v(A_+2*p, 2)
            a(f"v_pk_mul_f32 {a2}, {a2}, {v(ts,2)} op_sel:[0,1] op_sel_hi:[1,1]")
        for p in range(2):
            a(f"v_cvt_pk_bf16_f32 {v(o+p)}, {v(A_+2*p)}, {v(A_+2*p+1)}")
    a(f"s_and_b32 {s(S_TMP)}, {s(S_NB)}, 3")
    a(f"s_lshl_b32 {s(S_TMP)}, {s(S_TMP)}, 3")
    a(f"s_lshl_b32 {s(S_TMP2)}, {s(S_WN)}, 2")
    a(f"s_add_u32 {s(S_E1)}, {s(S_TMP)}, {s(S_TMP2)}")
    a(f"v_and_b32 {v(T)}, 15, {v(L)}")
    a(f"v_lshrrev_b32 {v(T+1)}, 4, {v(L)}")
    a(f"s_cmp_eq_u32 {s(S_SEC)}, 1")
    a(f"s_cbranch_scc1 {lK}")
    a(f"s_cmp_eq_u32 {s(S_SEC)}, 2")
    a(f"s_cbranch_scc1 {lV}")
    for j in range(5):
        a(f"v_add_u32 {v(T+2)}, {4*j}, {v(T+1)}")
        a(f"v_mul_u32_u24 {v(T+3)}, 52429, {v(T+2)}")
        a(f"v_lshrrev_b32 {v(T+3)}, 18, {v(T+3)}")
        a(f"v_mul_u32_u24 {v(T+4)}, 5, {v(T+3)}")
        a(f"v_sub_u32 {v(T+4)}, {v(T+2)}, {v(T+4)}")
        a(f"v_mul_u32_u24 {v(T+3)}, {2048*48}, {v(T+3)}")
        a(f"v_lshl_add_u32 {v(T+3)}, {v(T+4)}, 3, {v(T+3)}")
        a(f"v_mul_u32_u24 {v(T+4)}, 48, {v(T)}")
        a(f"v_add_u32 {v(OFF+j)}, {v(T+3)}, {v(T+4)}")
    a(f"s_mul_i32 {s(S_E0)}, {s(S_E1)}, 98304")
    a(f"s_lshl_b32 {s(S_TMP)}, {s(S_MB)}, 8")
    a(f"s_lshl_b32 {s(S_TMP2)}, {s(S_WM)}, 6")
    a(f"s_add_u32 {s(S_TMP)}, {s(S_TMP)}, {s(S_TMP2)}")
    a(f"s_mul_i32 {s(S_TMP)}, {s(S_TMP)}, 48")
    a(f"s_add_u32 {s(S_E0)}, {s(S_E0)}, {s(S_TMP)}")
    a(f"s_add_u32 {s(S_E0)}, {s(S_E0)}, {WS_Q}")
    k = 0
    for f in range(4):
        for j in range(5):
            o = YB + 2*(k % 12); k += 1
            compute_y(f, j, o)
            a(f"s_add_u32 {s(S_TMP)}, {s(S_E0)}, {f*16*48}")
            a(f"buffer_store_dwordx2 {v(o,2)}, {v(OFF+j)}, {s(S_WS,4)}, {s(S_TMP)} offen")
    a(f"s_branch {lEnd}")
    a.label(lK)
    a(f"v_and_b32 {v(T+5)}, 3, {v(T)}")
    a(f"v_bfe_u32 {v(T+2)}, {v(T)}, 2, 1")
    a(f"v_lshl_or_b32 {v(T+5)}, {v(T+2)}, 3, {v(T+5)}")
    a(f"v_bfe_u32 {v(T+2)}, {v(T)}, 3, 1")
    a(f"v_lshl_or_b32 {v(T+5)}, {v(T+2)}, 2, {v(T+5)}")
    for j in range(5):
        a(f"v_add_u32 {v(T+2)}, {4*j}, {v(T+1)}")
        a(f"v_mul_u32_u24 {v(T+3)}, 52429, {v(T+2)}")
        a(f"v_lshrrev_b32 {v(T+3)}, 18, {v(T+3)}")
        a(f"v_mul_u32_u24 {v(T+4)}, 5, {v(T+3)}")
        a(f"v_sub_u32 {v(T+4)}, {v(T+2)}, {v(T+4)}")
        a(f"v_mul_u32_u24 {v(T+3)}, 81920, {v(T+3)}")
        a(f"v_lshrrev_b32 {v(T+2)}, 1, {v(T+4)}")
        a(f"v_lshl_add_u32 {v(T+3)}, {v(T+2)}, 9, {v(T+3)}")
        a(f"v_and_b32 {v(T+2)}, 1, {v(T+4)}")
        a(f"v_lshl_add_u32 {v(T+3)}, {v(T+2)}, 3, {v(T+3)}")
        a(f"v_cmp_eq_u32 vcc, 4, {v(T+4)}")
        a(f"v_mov_b32 {v(T+2)}, 4")
        a(f"v_mov_b32 {v(T+4)}, 3")
        a(f"v_cndmask_b32 {v(T+2)}, {v(T+2)}, {v(T+4)}, vcc")
        a(f"v_lshlrev_b32 {v(T+4)}, {v(T+2)}, {v(T+5)}")
        a(f"v_add_u32 {v(OFF+j)}, {v(T+3)}, {v(T+4)}")
        a(f"v_lshlrev_b32 {v(T+4)}, {v(T+2)}, 16")
        a.lines.pop()
        a(f"v_mov_b32 {v(T+4)}, 16")
        a(f"v_lshlrev_b32 {v(T+4)}, {v(T+2)}, {v(T+4)}")
        a(f"v_add_u32 {v(OFF+5+j)}, {v(OFF+j)}, {v(T+4)}")
    a(f"s_mul_i32 {s(S_E0)}, {s(S_E1)}, 81920")
    a(f"s_lshl_b32 {s(S_TMP)}, {s(S_MB)}, 3")
    a(f"s_lshl_b32 {s(S_TMP2)}, {s(S_WM)}, 1")
    a(f"s_add_u32 {s(S_TMP)}, {s(S_TMP)}, {s(S_TMP2)}")
    a(f"s_mul_i32 {s(S_TMP)}, {s(S_TMP)}, 1280")
    a(f"s_add_u32 {s(S_E0)}, {s(S_E0)}, {s(S_TMP)}")
    a(f"s_add_u32 {s(S_E2)}, {s(S_E0)}, {WS_K}")
    k = 0
    for f in range(4):
        for j in range(5):
            o = YB + 2*(k % 12); k += 1
            compute_y(f, j, o)
            a(f"s_add_u32 {s(S_TMP)}, {s(S_E2)}, {(f>>1)*1280}")
            a(f"buffer_store_dwordx2 {v(o,2)}, {v(OFF+5*(f&1)+j)}, {s(S_WS,4)}, {s(S_TMP)} offen")
    a(f"s_branch {lEnd}")
    a.label(lV)
    RSV = 176
    SCR = 49152
    a(f"s_mul_i32 {s(S_TMP)}, {s(S_W)}, {64*RSV}")
    a(f"s_add_u32 {s(S_TMP)}, {s(S_TMP)}, {SCR}")
    a(f"v_mul_u32_u24 {v(T+2)}, {RSV}, {v(T)}")
    a(f"v_lshl_add_u32 {v(T+2)}, {v(T+1)}, 3, {v(T+2)}")
    a(f"v_add_u32 {v(OFF+10)}, {s(S_TMP)}, {v(T+2)}")
    a(f"v_lshrrev_b32 {v(T+2)}, 2, {v(T)}")
    a(f"v_lshl_add_u32 {v(T+2)}, {v(T+1)}, 2, {v(T+2)}")
    a(f"v_mul_u32_u24 {v(T+2)}, {RSV}, {v(T+2)}")
    a(f"v_and_b32 {v(T+3)}, 3, {v(L)}")
    a(f"v_lshl_add_u32 {v(T+2)}, {v(T+3)}, 3, {v(T+2)}")
    a(f"v_add_u32 {v(OFF+11)}, {s(S_TMP)}, {v(T+2)}")
    for j in range(5):
        a(f"v_add_u32 {v(T+2)}, {16*j}, {v(T)}")
        a(f"v_mul_u32_u24 {v(T+3)}, 52429, {v(T+2)}")
        a(f"v_lshrrev_b32 {v(T+3)}, 20, {v(T+3)}")
        a(f"v_mul_u32_u24 {v(T+4)}, 20, {v(T+3)}")
        a(f"v_sub_u32 {v(T+4)}, {v(T+2)}, {v(T+4)}")
        a(f"v_mul_u32_u24 {v(T+3)}, 81920, {v(T+3)}")
        a(f"v_lshl_add_u32 {v(T+3)}, {v(T+4)}, 4, {v(T+3)}")
        a(f"v_lshrrev_b32 {v(T+2)}, 1, {v(T+1)}")
        a(f"v_mul_u32_u24 {v(T+2)}, 320, {v(T+2)}")
        a(f"v_add_u32 {v(T+3)}, {v(T+3)}, {v(T+2)}")
        a(f"v_and_b32 {v(T+2)}, 1, {v(T+1)}")
        a(f"v_lshl_add_u32 {v(OFF+j)}, {v(T+2)}, 3, {v(T+3)}")
    a(f"s_mul_i32 {s(S_E0)}, {s(S_E1)}, 81920")
    a(f"s_lshl_b32 {s(S_TMP)}, {s(S_MB)}, 3")
    a(f"s_lshl_b32 {s(S_TMP2)}, {s(S_WM)}, 1")
    a(f"s_add_u32 {s(S_TMP)}, {s(S_TMP)}, {s(S_TMP2)}")
    a(f"s_mul_i32 {s(S_TMP)}, {s(S_TMP)}, 1280")
    a(f"s_add_u32 {s(S_E0)}, {s(S_E0)}, {s(S_TMP)}")
    a(f"s_add_u32 {s(S_E2)}, {s(S_E0)}, {WS_V}")
    k = 0
    for f in range(4):
        for j in range(5):
            o = YB + 2*(k % 12); k += 1
            compute_y(f, j, o)
            a(f"ds_write_b64 {v(OFF+10)}, {v(o,2)} offset:{f*16*RSV + j*32}")
    a("s_waitcnt lgkmcnt(0)")
    k = 0
    for f in range(4):
        for j in range(5):
            o = V_ACC + 2*k; k += 1
            a(f"ds_read_b64_tr_b16 {v(o,2)}, {v(OFF+11)} offset:{f*16*RSV + j*32}")
    a("s_waitcnt lgkmcnt(0)")
    k = 0
    for f in range(4):
        for j in range(5):
            o = V_ACC + 2*k; k += 1
            a(f"s_add_u32 {s(S_TMP)}, {s(S_E2)}, {(f>>1)*1280 + (f&1)*640}")
            a(f"buffer_store_dwordx2 {v(o,2)}, {v(OFF+j)}, {s(S_WS,4)}, {s(S_TMP)} offen")
    a.label(lEnd)

def transposer(a):
    T = V_T0; L = V_LANE
    a(f"s_lshl_b32 {s(S_TMP)}, {s(S_NB)}, 3")
    a(f"s_add_u32 {s(S_E0)}, {s(S_TMP)}, {s(S_W)}")
    a(f"v_lshrrev_b32 {v(T)}, 3, {v(L)}")
    a(f"v_mul_u32_u24 {v(T)}, 1280, {v(T)}")
    a(f"v_bfe_u32 {v(T+1)}, {v(L)}, 4, 1")
    a(f"v_lshlrev_b32 {v(T+1)}, 1, {v(T+1)}")
    a(f"v_and_b32 {v(T+2)}, 7, {v(L)}")
    a(f"v_xor_b32 {v(T+2)}, {v(T+2)}, {v(T+1)}")
    a(f"v_lshl_add_u32 {v(V_DM[0])}, {v(T+2)}, 4, {v(T)}")
    a(f"v_xor_b32 {v(V_DM[1])}, 64, {v(V_DM[0])}")
    a(f"v_and_b32 {v(T)}, 15, {v(L)}")
    a(f"v_lshrrev_b32 {v(T+1)}, 4, {v(L)}")
    a(f"v_lshrrev_b32 {v(T+2)}, 2, {v(T)}")
    a(f"v_lshl_add_u32 {v(T+3)}, {v(T+1)}, 3, {v(T+2)}")
    a(f"v_lshlrev_b32 {v(T+3)}, 7, {v(T+3)}")
    a(f"v_and_b32 {v(T+4)}, 3, {v(L)}")
    a(f"v_lshl_add_u32 {v(T+3)}, {v(T+4)}, 3, {v(T+3)}")
    a(f"v_lshrrev_b32 {v(T+2)}, 1, {v(T+2)}")
    a(f"v_and_b32 {v(T+1)}, 1, {v(T+1)}")
    a(f"v_lshl_or_b32 {v(T+2)}, {v(T+1)}, 1, {v(T+2)}")
    a(f"s_mul_i32 {s(S_TMP)}, {s(S_W)}, 4096")
    a(f"v_add_u32 {v(T+3)}, {s(S_TMP)}, {v(T+3)}")
    for jj in range(4):
        a(f"v_xor_b32 {v(T+4)}, {jj}, {v(T+2)}")
        a(f"v_lshl_add_u32 {v(V_XS1+jj)}, {v(T+4)}, 5, {v(T+3)}")
    a(f"v_lshlrev_b32 {v(V_XS2)}, 4, {v(L)}")
    loop = a.newlabel("tloop"); done = a.newlabel("tdone"); lwd = a.newlabel("twd"); lgo = a.newlabel("tgo")
    a.label(loop)
    a(f"s_cmp_ge_u32 {s(S_E0)}, 740")
    a(f"s_cbranch_scc1 {done}")
    a(f"s_cmp_ge_u32 {s(S_E0)}, 200")
    a(f"s_cbranch_scc1 {lwd}")
    a(f"s_mov_b32 {s(S_B)}, s20\ns_mov_b32 {s(S_B+1)}, s21\ns_mov_b32 {s(S_B+2)}, {WO_BYTES}")
    a(f"s_mov_b32 {s(S_E1)}, {s(S_E0)}")
    a(f"s_mov_b32 {s(S_E2)}, 20")
    a(f"s_mov_b32 {s(S_E3)}, {WS_WO}")
    a(f"s_branch {lgo}")
    a.label(lwd)
    a(f"s_mov_b32 {s(S_B)}, s28\ns_mov_b32 {s(S_B+1)}, s29\ns_mov_b32 {s(S_B+2)}, {WD_BYTES}")
    a(f"s_sub_u32 {s(S_E1)}, {s(S_E0)}, 200")
    a(f"s_mov_b32 {s(S_E2)}, 54")
    a(f"s_mov_b32 {s(S_E3)}, {WS_WD}")
    a.label(lgo)
    a(f"s_mov_b32 {s(S_B+3)}, 0x20000")
    a(f"s_mul_i32 {s(S_TMP)}, {s(S_E1)}, 52429")
    a(f"s_lshr_b32 {s(S_TMP)}, {s(S_TMP)}, 19")
    a(f"s_mul_i32 {s(S_TMP2)}, {s(S_TMP)}, 10")
    a(f"s_sub_u32 {s(S_TMP2)}, {s(S_E1)}, {s(S_TMP2)}")
    a(f"s_mul_i32 {s(S_AOFF)}, {s(S_TMP)}, {32*1280}")
    a(f"s_lshl_b32 {s(S_AT)}, {s(S_TMP2)}, 7")
    a(f"s_add_u32 {s(S_AOFF)}, {s(S_AOFF)}, {s(S_AT)}")
    a(f"s_mul_i32 {s(S_AM0)}, {s(S_W)}, 4096")
    for i in range(4):
        a(f"s_add_u32 m0, {s(S_AM0)}, {i*1024}")
        a(f"s_add_u32 {s(S_AT)}, {s(S_AOFF)}, {i*8*1280}")
        a(f"buffer_load_dwordx4 {v(V_DM[i&1])}, {s(S_B,4)}, {s(S_AT)} offen lds")
    a(f"s_lshl_b32 {s(S_TMP2)}, {s(S_TMP2)}, 2")
    a(f"s_mul_i32 {s(S_TMP2)}, {s(S_TMP2)}, {s(S_E2)}")
    a(f"s_add_u32 {s(S_TMP2)}, {s(S_TMP2)}, {s(S_TMP)}")
    a(f"s_lshl_b32 {s(S_TMP2)}, {s(S_TMP2)}, 10")
    a(f"s_add_u32 {s(S_TMP2)}, {s(S_TMP2)}, {s(S_E3)}")
    a(f"s_lshl_b32 {s(S_E2)}, {s(S_E2)}, 10")
    a("s_waitcnt vmcnt(0)")
    for jj in range(4):
        a(f"ds_read_b64_tr_b16 {v(V_ACC+4*jj,2)}, {v(V_XS1+jj)}")
        a(f"ds_read_b64_tr_b16 {v(V_ACC+4*jj+2,2)}, {v(V_XS1+jj)} offset:512")
    a("s_waitcnt lgkmcnt(0)")
    for jj in range(4):
        a(f"buffer_store_dwordx4 {v(V_ACC+4*jj,4)}, {v(V_XS2)}, {s(S_WS,4)}, {s(S_TMP2)} offen")
        a(f"s_add_u32 {s(S_TMP2)}, {s(S_TMP2)}, {s(S_E2)}")
    a(f"s_add_u32 {s(S_E0)}, {s(S_E0)}, 128")
    a(f"s_branch {loop}")
    a.label(done)

def prof_end(a):
    dbg_end(a, 0, V_ACC)
    if PROF:
        a("s_waitcnt vmcnt(0)")
        stamp(a, 5); stamp_cyc(a, 7)
        stamp_flush(a, 0, S_WS, S_W, V_ACC)

def gen_k1(a, name="k1_kernel"):
    header(a, name)
    lend = "L_k1_end"; lG = "L_k1_G"; lT = "L_k1_T"
    a("s_cmp_ge_u32 s2, 256")
    a(f"s_cbranch_scc1 {lend}")
    stamp(a, 0); stamp_cyc(a, 6)
    dbg_begin(a)
    a("s_load_dwordx4 s[16:19], s[0:1], 0")
    a("s_load_dwordx4 s[20:23], s[0:1], 16")
    a("s_load_dwordx4 s[24:27], s[0:1], 32")
    a("s_load_dwordx2 s[28:29], s[0:1], 48")
    a("s_load_dwordx2 s[30:31], s[0:1], 72")
    setup_common(a)
    a(f"s_and_b32 {s(S_TMP)}, s2, 7")
    a(f"s_lshr_b32 {s(S_TMP2)}, s2, 3")
    a(f"s_and_b32 {s(S_MB)}, {s(S_TMP)}, 1")
    a(f"s_lshl_b32 {s(S_MB)}, {s(S_MB)}, 2")
    a(f"s_and_b32 {s(S_E0)}, {s(S_TMP2)}, 3")
    a(f"s_add_u32 {s(S_MB)}, {s(S_MB)}, {s(S_E0)}")
    a(f"s_lshr_b32 {s(S_E1)}, {s(S_TMP)}, 1")
    a(f"s_lshr_b32 {s(S_E2)}, {s(S_TMP2)}, 2")
    a(f"s_lshl_b32 {s(S_NB)}, {s(S_E2)}, 2")
    a(f"s_add_u32 {s(S_NB)}, {s(S_NB)}, {s(S_E1)}")
    a("s_waitcnt lgkmcnt(0)")
    a(f"s_mov_b32 {s(S_X)}, s16\ns_mov_b32 {s(S_X+1)}, s17\ns_mov_b32 {s(S_X+2)}, {X_BYTES}\ns_mov_b32 {s(S_X+3)}, 0x20000")
    a(f"s_mov_b32 {s(S_WS)}, s30\ns_mov_b32 {s(S_WS+1)}, s31\ns_mov_b32 {s(S_WS+2)}, 0x2000000\ns_mov_b32 {s(S_WS+3)}, 0x20000")
    a(f"s_cmp_ge_u32 {s(S_NB)}, 30")
    a(f"s_cbranch_scc1 {lT}")
    a(f"s_cmp_ge_u32 {s(S_NB)}, 12")
    a(f"s_cbranch_scc1 {lG}")
    a(f"s_mov_b32 {s(S_B)}, s18\ns_mov_b32 {s(S_B+1)}, s19\ns_mov_b32 {s(S_B+2)}, {WQKV_BYTES}\ns_mov_b32 {s(S_B+3)}, 0x20000")
    a(f"s_lshr_b32 {s(S_SEC)}, {s(S_NB)}, 2")
    a(f"s_cmp_eq_u32 {s(S_SEC)}, 0")
    a(f"s_cselect_b32 {s(S_E3)}, {fhex(QSCALE)}, 1.0")
    setup_gemm(a, 5, 320, 20, 5, 3840, False)
    main_loop(a, 5, 320, [(0, j) for j in range(5)], "k1q")
    stats_exchange(a, 5, False)
    stamp(a, 4)
    epilogue_Q(a)
    prof_end(a)
    a("s_endpgm")
    a.label(lG)
    a(f"s_sub_u32 {s(S_NB)}, {s(S_NB)}, 12")
    a(f"s_cmp_lt_u32 {s(S_W)}, 2")
    a(f"s_cselect_b32 {s(S_B)}, s24, s26")
    a(f"s_cselect_b32 {s(S_B+1)}, s25, s27")
    a(f"s_mov_b32 {s(S_B+2)}, {WG_BYTES}\ns_mov_b32 {s(S_B+3)}, 0x20000")
    setup_gemm(a, 6, 192, 12, 3, 3456, True)
    main_loop(a, 6, 192, [(0, 0), (0, 1), (0, 2), (6144, 0), (6144, 1), (6144, 2)], "k1g")
    stats_exchange(a, 6, True)
    stamp(a, 4)
    epilogue_G(a)
    prof_end(a)
    a("s_endpgm")
    a.label(lT)
    a(f"s_sub_u32 {s(S_E1)}, {s(S_E1)}, 2")
    a(f"s_lshl_b32 {s(S_E1)}, {s(S_E1)}, 3")
    a(f"s_add_u32 {s(S_NB)}, {s(S_E1)}, {s(S_MB)}")
    transposer(a)
    prof_end(a)
    a.label(lend)
    a("s_endpgm")
    return kd(name, NVGPR)
```

```python
from asmlib import *
from common import *

LAUNCH = "; @launch kernel=k2_kernel grid=(256,1,1) block=(512,1,1) lds=98304"
BIAS = 96.0

S_WS = 4
S_HEAD, S_QB, S_W, S_QG, S_KQ = 8, 9, 10, 11, 12
S_KB, S_VB, S_CNT = 13, 14, 15
S_VM = 16
S_KO, S_VO = 18, 19
S_FLAG = 20
S_T0, S_T1 = 21, 28
S_LO = 22
S_M = 24
S_T2, S_T3 = 26, 27

V_O = 16
V_Q = 80
V_S = [112, 128]
V_P = 144
V_KV = [152, 168]
V_AK0, V_AK1, V_AV = 184, 185, 186
V_LANE = 187
V_MX = 188
V_T = 192
NVGPR = 200

def Q0(qt): return V_Q + 8*qt
def Q1(qt): return V_Q + 8*qt + 4
def K0(b): return V_KV[b]
def K1(b): return V_KV[b] + 4
def V0(b): return V_KV[b] + 8
def V1(b): return V_KV[b] + 12
def O(qt): return V_O + 16*qt

def loadK(a, b):
    a(f"buffer_load_dwordx4 {v(K0(b),4)}, {v(V_AK0)}, {s(S_WS,4)}, {s(S_KO)} offen")
    a(f"buffer_load_dwordx2 {v(K1(b),2)}, {v(V_AK1)}, {s(S_WS,4)}, {s(S_KO)} offen")
    a(f"s_add_u32 {s(S_KO)}, {s(S_KO)}, 1280")
def loadV(a, b):
    a(f"s_mov_b64 exec, {s(S_VM,2)}")
    a(f"buffer_load_dwordx4 {v(V0(b),4)}, {v(V_AV)}, {s(S_WS,4)}, {s(S_VO)} offen")
    a(f"buffer_load_dwordx4 {v(V1(b),4)}, {v(V_AV)}, {s(S_WS,4)}, {s(S_VO)} offen offset:640")
    a(f"s_mov_b64 exec, -1")
    a(f"s_add_u32 {s(S_VO)}, {s(S_VO)}, 1280")

def smf(dst, b, qt):
    m1 = f"v_mfma_f32_32x32x16_bf16 {v(dst,16)}, {v(K0(b),4)}, {v(Q0(qt),4)}, 0"
    m2 = f"v_mfma_f32_32x32x16_bf16 {v(dst,16)}, {v(K1(b),4)}, {v(Q1(qt),4)}, {v(dst,16)}"
    return m1, m2

def set_mterms(a, bias):
    T = V_T
    for qt in range(4):
        mx = V_MX + qt
        if bias: a(f"v_add_f32 {v(mx)}, {fhex(bias)}, {v(mx)}")
        a(f"v_sub_f32 {v(T)}, 0, {v(mx)}")
        a(f"v_cndmask_b32 {v(T)}, 0, {v(T)}, {s(S_LO,2)}")
        a(f"v_cvt_pk_bf16_f32 {v(T+1)}, {v(T)}, {v(T)}")
        a(f"v_lshlrev_b32 {v(T+1)}, 16, {v(T+1)}")
        a(f"v_sub_f32 {v(T+2)}, {v(T)}, {v(T+1)}")
        a(f"v_cvt_pk_bf16_f32 {v(T+1)}, {v(T+2)}, {v(T+2)}")
        a(f"v_lshlrev_b32 {v(T+1)}, 16, {v(T+1)}")
        a(f"v_sub_f32 {v(T+3)}, {v(T+2)}, {v(T+1)}")
        a(f"v_cvt_pk_bf16_f32 {v(Q1(qt)+2)}, {v(T)}, {v(T+2)}")
        a(f"v_mov_b32 {v(T+1)}, 0")
        a(f"v_cvt_pk_bf16_f32 {v(Q1(qt)+3)}, {v(T+3)}, {v(T+1)}")

def crosshalf_max(a, reg):
    T = V_T
    a(f"v_mov_b32 {v(T)}, {v(reg)}")
    a(f"v_mov_b32 {v(T+1)}, {v(reg)}")
    a("s_nop 1")
    a(f"v_permlane32_swap_b32 {v(T)}, {v(T+1)}")
    a("s_nop 1")
    a(f"v_max_f32 {v(reg)}, {v(T)}, {v(T+1)}")

def max16(a, mx, sb, first):
    if first:
        a(f"v_max3_f32 {v(mx)}, {v(sb)}, {v(sb+1)}, {v(sb+2)}")
        a(f"v_max_f32 {v(mx)}, {v(mx)}, {v(sb+3)}")
        st = 4
    else:
        st = 0
    for i in range(st, 16, 2):
        a(f"v_max3_f32 {v(mx)}, {v(mx)}, {v(sb+i)}, {v(sb+i+1)}")

def unit(a, b_cur, qt, sb_cur, nxt_b, nxt_qt, vprev_b, vprev_qt, pre=None, mid=None, afterM4=None, afterM2=None, beforeM3=None):
    sb_nxt = V_S[0] if sb_cur == V_S[1] else V_S[1]
    m1, m2 = smf(sb_nxt, nxt_b, nxt_qt)
    m3 = f"v_mfma_f32_32x32x16_bf16 {v(O(qt),16)}, {v(V0(b_cur),4)}, {v(V_P,4)}, {v(O(qt),16)}"
    m4 = f"v_mfma_f32_32x32x16_bf16 {v(O(vprev_qt),16)}, {v(V1(vprev_b),4)}, {v(V_P+4,4)}, {v(O(vprev_qt),16)}"
    E = lambda i: a(f"v_exp_f32 {v(sb_cur+i)}, {v(sb_cur+i)}")
    C = lambda i: a(f"v_cvt_pk_bf16_f32 {v(V_P+i)}, {v(sb_cur+2*i)}, {v(sb_cur+2*i+1)}")
    if pre: pre()
    a(m1)
    for i in range(0, 6): E(i)
    a(m4)
    if afterM4: afterM4()
    E(6); E(7)
    for i in range(4): C(i)
    a(m2)
    if afterM2: afterM2()
    for i in range(8, 14): E(i)
    if beforeM3: beforeM3()
    a(m3)
    E(14); E(15)
    for i in range(4, 8): C(i)

def gen_k2(a, name="k2_kernel"):
    header(a, name)
    T = V_T; L = V_LANE
    a("s_cmp_ge_u32 s2, 256")
    a("s_cbranch_scc1 L_k2_end")
    stamp(a, 0); stamp_cyc(a, 6)
    dbg_begin(a)
    a("s_load_dwordx2 s[4:5], s[0:1], 72")
    a(f"v_and_b32 {v(L)}, 63, v0")
    a(f"v_lshrrev_b32 v1, 6, v0")
    a("s_nop 0")
    a(f"v_readfirstlane_b32 {s(S_W)}, v1")
    a(f"s_and_b32 {s(S_T0)}, s2, 7")
    a(f"s_lshl_b32 {s(S_HEAD)}, {s(S_T0)}, 2")
    a(f"s_bfe_u32 {s(S_T0)}, s2, 0x20003")
    a(f"s_add_u32 {s(S_HEAD)}, {s(S_HEAD)}, {s(S_T0)}")
    a(f"s_lshr_b32 {s(S_QB)}, s2, 5")
    a(f"s_and_b32 {s(S_QG)}, {s(S_W)}, 1")
    a(f"s_lshr_b32 {s(S_KQ)}, {s(S_W)}, 1")
    a(f"s_mov_b32 s6, 0x2000000\ns_mov_b32 s7, 0x20000")
    a(f"s_mov_b32 {s(S_VM)}, 0x000fffff\ns_mov_b32 {s(S_VM+1)}, 0x000fffff")
    a(f"s_mov_b32 {s(S_LO)}, -1\ns_mov_b32 {s(S_LO+1)}, 0")
    a(f"s_lshl_b32 {s(S_T0)}, {s(S_HEAD)}, 6")
    a(f"s_lshl_b32 {s(S_T1)}, {s(S_KQ)}, 4")
    a(f"s_add_u32 {s(S_T0)}, {s(S_T0)}, {s(S_T1)}")
    a(f"s_mul_i32 {s(S_T0)}, {s(S_T0)}, 1280")
    a(f"s_add_u32 {s(S_KB)}, {s(S_T0)}, {WS_K}")
    a(f"s_add_u32 {s(S_VB)}, {s(S_T0)}, {WS_V}")
    a(f"v_lshlrev_b32 {v(V_AK0)}, 4, {v(L)}")
    a(f"v_and_b32 {v(T)}, 31, {v(L)}")
    a(f"v_lshlrev_b32 {v(V_AK1)}, 3, {v(T)}")
    a(f"v_add_u32 {v(V_AK1)}, 1024, {v(V_AK1)}")
    a(f"v_lshrrev_b32 {v(T+1)}, 5, {v(L)}")
    a(f"v_mul_u32_u24 {v(V_AV)}, 320, {v(T+1)}")
    a(f"v_lshl_add_u32 {v(V_AV)}, {v(T)}, 4, {v(V_AV)}")
    a(f"v_mul_u32_u24 {v(T+2)}, 48, {v(T)}")
    a(f"v_lshl_add_u32 {v(T+3)}, {v(T+1)}, 4, {v(T+2)}")
    a(f"s_lshl_b32 {s(S_T0)}, {s(S_HEAD)}, 11")
    a(f"s_lshl_b32 {s(S_T1)}, {s(S_QB)}, 8")
    a(f"s_add_u32 {s(S_T0)}, {s(S_T0)}, {s(S_T1)}")
    a(f"s_lshl_b32 {s(S_T1)}, {s(S_QG)}, 7")
    a(f"s_add_u32 {s(S_T0)}, {s(S_T0)}, {s(S_T1)}")
    a(f"s_mul_i32 {s(S_T0)}, {s(S_T0)}, 48")
    a(f"s_add_u32 {s(S_T0)}, {s(S_T0)}, {WS_Q}")
    for b in range(2):
        a(f"v_mov_b32 {v(K1(b)+2)}, 0x3f803f80")
        a(f"v_mov_b32 {v(K1(b)+3)}, 0x00003f80")
    a(f"v_cmp_eq_u32 {s(S_M,2)}, 20, {v(T)}")
    a(f"v_cmp_eq_u32 vcc, 24, {v(T)}")
    a("s_nop 1")
    a(f"s_or_b64 {s(S_M,2)}, {s(S_M,2)}, vcc")
    a(f"v_mov_b32 {v(T+4)}, 0x3f803f80")
    a("s_nop 0")
    a(f"v_cndmask_b32 {v(T+4)}, 0, {v(T+4)}, {s(S_M,2)}")
    for b in range(2):
        for i in range(8): a(f"v_mov_b32 {v(V0(b)+i)}, {v(T+4)}")
    for qt in range(4):
        for i in range(4): a(f"v_mov_b32 {v(Q1(qt)+i)}, 0")
    a("s_waitcnt lgkmcnt(0)")
    for qt in range(4):
        a(f"s_add_u32 {s(S_T1)}, {s(S_T0)}, {qt*32*48}")
        a(f"buffer_load_dwordx4 {v(Q0(qt),4)}, {v(T+3)}, {s(S_WS,4)}, {s(S_T1)} offen")
        a(f"s_mov_b64 exec, {s(S_LO,2)}")
        a(f"buffer_load_dwordx2 {v(Q1(qt),2)}, {v(T+2)}, {s(S_WS,4)}, {s(S_T1)} offen offset:32")
        a(f"s_mov_b64 exec, -1")
    a(f"s_mov_b32 {s(S_KO)}, {s(S_KB)}")
    loadK(a, 0); loadK(a, 1)
    a(f"s_mov_b32 {s(S_FLAG)}, 0")
    a("s_waitcnt vmcnt(0)")
    stamp(a, 1)
    for qt in range(4):
        m1, m2 = smf(V_S[0], 0, qt); a(m1); a(m2)
        m1, m2 = smf(V_S[1], 1, qt); a(m1); a(m2)
        a.nop(12)
        max16(a, V_MX+qt, V_S[0], True)
        max16(a, V_MX+qt, V_S[1], False)
        crosshalf_max(a, V_MX+qt)
    set_mterms(a, BIAS)
    a.label("L_k2_main")
    for i in range(64): a(f"v_mov_b32 {v(V_O+i)}, 0")
    for i in range(8): a(f"v_mov_b32 {v(V_P+i)}, 0")
    a(f"s_mov_b32 {s(S_KO)}, {s(S_KB)}")
    a(f"s_mov_b32 {s(S_VO)}, {s(S_VB)}")
    loadK(a, 0); loadV(a, 0); loadK(a, 1)
    a("s_waitcnt vmcnt(4)")
    m1, m2 = smf(V_S[0], 0, 0); a(m1); a(m2)
    a.nop(12)
    a(f"s_mov_b32 {s(S_CNT)}, 0")
    stamp(a, 2)
    a.label("L_k2_loop")
    sb = 0
    for b in range(2):
        nb = b ^ 1
        for qt in range(4):
            nxt_b, nxt_qt = (b, qt+1) if qt < 3 else (nb, 0)
            vprev_b, vprev_qt = (b, qt-1) if qt > 0 else (nb, 3)
            kw = {}
            if qt == 0:
                kw["afterM4"] = lambda nb=nb: loadV(a, nb)
                kw["beforeM3"] = lambda: a("s_waitcnt vmcnt(4)")
            if qt == 2:
                kw["afterM2"] = lambda b=b: loadK(a, b)
            if qt == 3:
                kw["pre"] = lambda: a("s_waitcnt vmcnt(4)")
            unit(a, b, qt, V_S[sb], nxt_b, nxt_qt, vprev_b, vprev_qt, **kw)
            sb ^= 1
    a(f"s_add_u32 {s(S_CNT)}, {s(S_CNT)}, 1")
    a(f"s_cmp_lt_u32 {s(S_CNT)}, 8")
    a("s_cbranch_scc1 L_k2_loop")
    a("s_nop 1")
    a(f"v_mfma_f32_32x32x16_bf16 {v(O(3),16)}, {v(V1(1),4)}, {v(V_P+4,4)}, {v(O(3),16)}")
    a("s_waitcnt vmcnt(0)")
    a.nop(12)
    stamp(a, 3)
    W = V_S[0]
    a(f"s_mov_b64 {s(S_M,2)}, 0")
    for qt in range(4):
        o = O(qt)
        l = W + qt
        a(f"v_cndmask_b32 {v(l)}, {v(o+8)}, {v(o+12)}, {s(S_LO,2)}")
        a(f"v_add_f32 {v(T)}, abs({v(o)}), abs({v(o+1)})")
        for i in range(2, 12): a(f"v_add_f32 {v(T)}, {v(T)}, abs({v(o+i)})")
        a(f"v_add_f32 {v(T)}, {v(T)}, {v(l)}")
        a(f"v_mov_b32 {v(T+1)}, 0x7e800000")
        a(f"v_cmp_nlt_f32 vcc, {v(T)}, {v(T+1)}")
        a("s_nop 1")
        a(f"s_or_b64 {s(S_M,2)}, {s(S_M,2)}, vcc")
    a(f"s_cmp_eq_u64 {s(S_M,2)}, 0")
    a("s_cbranch_scc1 L_k2_ok")
    a(f"s_cmp_lg_u32 {s(S_FLAG)}, 0")
    a("s_cbranch_scc1 L_k2_ok")
    a(f"s_mov_b32 {s(S_FLAG)}, 1")
    for qt in range(4):
        a(f"v_mov_b32 {v(Q1(qt)+2)}, 0")
        a(f"v_mov_b32 {v(Q1(qt)+3)}, 0")
        a(f"v_mov_b32 {v(V_MX+qt)}, 0xff800000")
    a(f"s_mov_b32 {s(S_KO)}, {s(S_KB)}")
    a(f"s_mov_b32 {s(S_CNT)}, 0")
    a.label("L_k2_fb")
    loadK(a, 0)
    a("s_waitcnt vmcnt(0)")
    for qt in range(4):
        m1, m2 = smf(V_S[0], 0, qt); a(m1); a(m2)
        a.nop(12)
        max16(a, V_MX+qt, V_S[0], False)
    a(f"s_add_u32 {s(S_CNT)}, {s(S_CNT)}, 1")
    a(f"s_cmp_lt_u32 {s(S_CNT)}, 16")
    a("s_cbranch_scc1 L_k2_fb")
    for qt in range(4): crosshalf_max(a, V_MX+qt)
    set_mterms(a, 0.0)
    a("s_branch L_k2_main")
    a.label("L_k2_ok")
    a(f"v_and_b32 {v(T)}, 31, {v(L)}")
    a(f"v_mul_u32_u24 {v(T)}, 96, {v(T)}")
    a(f"v_lshrrev_b32 {v(T+1)}, 5, {v(L)}")
    a(f"v_lshl_add_u32 {v(T)}, {v(T+1)}, 4, {v(T)}")
    a(f"s_lshl_b32 {s(S_T0)}, {s(S_KQ)}, 8")
    a(f"s_lshl_b32 {s(S_T1)}, {s(S_QG)}, 7")
    a(f"s_add_u32 {s(S_T0)}, {s(S_T0)}, {s(S_T1)}")
    a(f"s_mul_i32 {s(S_T0)}, {s(S_T0)}, 96")
    a(f"v_add_u32 {v(T)}, {s(S_T0)}, {v(T)}")
    for qt in range(4):
        o = O(qt); l = W + qt
        a(f"v_rcp_f32 {v(T+2)}, {v(l)}")
        a(f"v_log_f32 {v(T+3)}, {v(l)}")
        a("s_nop 0")
        for i in range(12): a(f"v_mul_f32 {v(o+i)}, {v(o+i)}, {v(T+2)}")
        a(f"v_add_f32 {v(T+3)}, {v(T+3)}, {v(V_MX+qt)}")
        off = qt*32*96
        a(f"ds_write_b128 {v(T)}, {v(o,4)} offset:{off}")
        a(f"ds_write_b128 {v(T)}, {v(o+4,4)} offset:{off+32}")
        a(f"s_mov_b64 exec, {s(S_LO,2)}")
        a(f"ds_write_b128 {v(T)}, {v(o+8,4)} offset:{off+64}")
        a(f"ds_write_b32 {v(T)}, {v(T+3)} offset:{off+80}")
        a(f"s_mov_b64 exec, -1")
    a("s_waitcnt lgkmcnt(0)")
    a("s_barrier")
    stamp(a, 4)
    a(f"v_lshrrev_b32 {v(T)}, 1, v0")
    a(f"v_and_b32 {v(T+1)}, 1, v0")
    a(f"v_mul_u32_u24 {v(T+2)}, 96, {v(T)}")
    R = V_O
    for w in range(4):
        a(f"v_add_u32 {v(T+4+w)}, {w*24576}, {v(T+2)}")
    for w in range(4):
        a(f"ds_read_b32 {v(R+w)}, {v(T+4+w)} offset:80")
    a(f"v_mul_u32_u24 {v(T+3)}, 48, {v(T+1)}")
    for w in range(4):
        a(f"v_add_u32 {v(T+4+w)}, {v(T+4+w)}, {v(T+3)}")
    for w in range(4):
        for k in range(3):
            a(f"ds_read_b128 {v(R+16+12*w+4*k,4)}, {v(T+4+w)} offset:{16*k}")
    a("s_waitcnt lgkmcnt(0)")
    a(f"v_max3_f32 {v(R+4)}, {v(R)}, {v(R+1)}, {v(R+2)}")
    a(f"v_max_f32 {v(R+4)}, {v(R+4)}, {v(R+3)}")
    for w in range(4): a(f"v_sub_f32 {v(R+w)}, {v(R+w)}, {v(R+4)}")
    for w in range(4): a(f"v_exp_f32 {v(R+w)}, {v(R+w)}")
    a("s_nop 0")
    a(f"v_add_f32 {v(R+5)}, {v(R)}, {v(R+1)}")
    a(f"v_add_f32 {v(R+6)}, {v(R+2)}, {v(R+3)}")
    a(f"v_add_f32 {v(R+5)}, {v(R+5)}, {v(R+6)}")
    a(f"v_rcp_f32 {v(R+5)}, {v(R+5)}")
    a("s_nop 0")
    for w in range(4): a(f"v_mul_f32 {v(R+w)}, {v(R+w)}, {v(R+5)}")
    for i in range(12):
        d = R + 16 + i
        a(f"v_mul_f32 {v(d)}, {v(d)}, {v(R)}")
        for w in range(1, 4):
            a(f"v_fmac_f32 {v(d)}, {v(R+16+12*w+i)}, {v(R+w)}")
    for k in range(3):
        a(f"v_cvt_pk_bf16_f32 {v(R+8+2*k)}, {v(R+16+4*k)}, {v(R+17+4*k)}")
        a(f"v_cvt_pk_bf16_f32 {v(R+9+2*k)}, {v(R+18+4*k)}, {v(R+19+4*k)}")
    a(f"s_lshl_b32 {s(S_T0)}, {s(S_QB)}, 8")
    a(f"v_add_u32 {v(T)}, {s(S_T0)}, {v(T)}")
    a(f"v_lshrrev_b32 {v(T+2)}, 4, {v(T)}")
    a(f"v_mul_u32_u24 {v(T+2)}, 20480, {v(T+2)}")
    a(f"v_and_b32 {v(T+3)}, 15, {v(T)}")
    a(f"v_lshl_add_u32 {v(T+2)}, {v(T+3)}, 4, {v(T+2)}")
    a(f"s_mul_i32 {s(S_T0)}, {s(S_HEAD)}, 5")
    a(f"v_mul_u32_u24 {v(T+3)}, 3, {v(T+1)}")
    a(f"v_add_u32 {v(T+3)}, {s(S_T0)}, {v(T+3)}")
    a(f"s_mov_b32 {s(S_T1)}, {WS_O}")
    for k in range(3):
        a(f"v_add_u32 {v(T+4)}, {k}, {v(T+3)}")
        a(f"v_lshrrev_b32 {v(T+5)}, 1, {v(T+4)}")
        a(f"v_lshl_add_u32 {v(T+5)}, {v(T+5)}, 8, {v(T+2)}")
        a(f"v_and_b32 {v(T+4)}, 1, {v(T+4)}")
        a(f"v_lshl_add_u32 {v(T+5)}, {v(T+4)}, 3, {v(T+5)}")
        if k == 2:
            a(f"v_cmp_eq_u32 vcc, 0, {v(T+1)}")
            a("s_nop 0")
            a(f"s_and_saveexec_b64 {s(S_M,2)}, vcc")
        a(f"buffer_store_dwordx2 {v(R+8+2*k,2)}, {v(T+5)}, {s(S_WS,4)}, {s(S_T1)} offen")
    if PROF:
        a("s_mov_b64 exec, -1")
        a("s_waitcnt vmcnt(0)")
        stamp(a, 5); stamp_cyc(a, 7)
        stamp_flush(a, 1, S_WS, S_W, V_O)
    if DBG: a("s_mov_b64 exec, -1")
    dbg_end(a, 1, V_O)
    a.label("L_k2_end")
    a("s_endpgm")
    return kd(name, NVGPR)
```

```python
from asmlib import *
from common import *

LAUNCH = "; @launch kernel=k3_kernel grid=(256,1,1) block=(512,1,1) lds=163840"

S_WS, S_X, S_OUT = 4, 8, 12
S_W, S_MB, S_NB = 16, 17, 18
S_A = 20
S_B = 24
S_NS = 29
S_T0, S_T1, S_KO = 30, 31, 32
S_M = 34

V_ACC = 16
V_F = [96, 132, 168]
V_L16 = 204
V_OFF = 205
V_LANE = 206
V_XC = 208
V_T = 216
NVGPR = 224

def gen_k3(a, name="k3_kernel"):
    header(a, name)
    T = V_T; L = V_LANE
    a("s_cmp_ge_u32 s2, 256")
    a("s_cbranch_scc1 L_k3_end")
    stamp(a, 0); stamp_cyc(a, 6)
    dbg_begin(a)
    a("s_load_dwordx2 s[4:5], s[0:1], 72")
    a("s_load_dwordx2 s[8:9], s[0:1], 0")
    a("s_load_dwordx2 s[12:13], s[0:1], 56")
    a(f"v_and_b32 {v(L)}, 63, v0")
    a(f"v_lshrrev_b32 v1, 6, v0")
    a("s_nop 0")
    a(f"v_readfirstlane_b32 {s(S_W)}, v1")
    a(f"s_and_b32 {s(S_T0)}, s2, 7")
    a(f"s_lshl_b32 {s(S_MB)}, {s(S_T0)}, 2")
    a(f"s_bfe_u32 {s(S_T0)}, s2, 0x20003")
    a(f"s_add_u32 {s(S_MB)}, {s(S_MB)}, {s(S_T0)}")
    a(f"s_lshr_b32 {s(S_NB)}, s2, 5")
    a("s_mov_b32 s6, 0x2000000\ns_mov_b32 s7, 0x20000")
    a(f"s_mov_b32 s10, {X_BYTES}\ns_mov_b32 s11, 0x20000")
    a(f"s_mov_b32 s14, {OUT_BYTES}\ns_mov_b32 s15, 0x20000")
    ls = a.newlabel("k3s"); lj = a.newlabel("k3j")
    a(f"s_cmp_lt_u32 {s(S_W)}, 2")
    a(f"s_cbranch_scc1 {ls}")
    a(f"s_sub_u32 {s(S_T0)}, {s(S_W)}, 2")
    a(f"s_mul_i32 {s(S_T0)}, {s(S_T0)}, {9*1024}")
    a(f"s_mov_b32 {s(S_T1)}, 55296")
    a(f"s_add_u32 {s(S_A)}, {s(S_T0)}, {WS_H}")
    a(f"s_add_u32 {s(S_B)}, {s(S_T0)}, {WS_WD}")
    a(f"s_mov_b32 {s(S_NS)}, 9")
    a(f"s_branch {lj}")
    a.label(ls)
    a(f"s_mul_i32 {s(S_T0)}, {s(S_W)}, {10*1024}")
    a(f"s_mov_b32 {s(S_T1)}, 20480")
    a(f"s_add_u32 {s(S_A)}, {s(S_T0)}, {WS_O}")
    a(f"s_add_u32 {s(S_B)}, {s(S_T0)}, {WS_WO}")
    a(f"s_mov_b32 {s(S_NS)}, 10")
    a.label(lj)
    a(f"s_lshl_b32 {s(S_T0)}, {s(S_MB)}, 2")
    a(f"s_mul_i32 {s(S_T0)}, {s(S_T0)}, {s(S_T1)}")
    a(f"s_add_u32 {s(S_A)}, {s(S_A)}, {s(S_T0)}")
    a(f"s_mul_i32 {s(S_T0)}, {s(S_NB)}, 5")
    a(f"s_mul_i32 {s(S_T0)}, {s(S_T0)}, {s(S_T1)}")
    a(f"s_add_u32 {s(S_B)}, {s(S_B)}, {s(S_T0)}")
    for i in range(1, 4): a(f"s_add_u32 {s(S_A+i)}, {s(S_A+i-1)}, {s(S_T1)}")
    for i in range(1, 5): a(f"s_add_u32 {s(S_B+i)}, {s(S_B+i-1)}, {s(S_T1)}")
    a(f"v_lshlrev_b32 {v(V_L16)}, 4, {v(L)}")
    for i in range(80): a(f"v_mov_b32 {v(V_ACC+i)}, 0")
    for r in range(2):
        a(f"v_add_u32 {v(T)}, {512*r}, v0")
        a(f"v_mul_u32_u24 {v(T+1)}, 52429, {v(T)}")
        a(f"v_lshrrev_b32 {v(T+1)}, 19, {v(T+1)}")
        a(f"v_mul_u32_u24 {v(T+2)}, 10, {v(T+1)}")
        a(f"v_sub_u32 {v(T+2)}, {v(T)}, {v(T+2)}")
        a(f"v_mul_u32_u24 {v(T+3)}, 1280, {v(T+1)}")
        a(f"v_lshl_add_u32 {v(T+3)}, {v(T+2)}, 4, {v(T+3)}")
        a(f"v_mul_u32_u24 {v(T+4+r)}, 320, {v(T+1)}")
        a(f"v_lshl_add_u32 {v(T+4+r)}, {v(T+2)}, 5, {v(T+4+r)}")
        a(f"s_lshl_b32 {s(S_T0)}, {s(S_MB)}, 6")
        a(f"s_mul_i32 {s(S_T0)}, {s(S_T0)}, 1280")
        a(f"s_mul_i32 {s(S_T1)}, {s(S_NB)}, 160")
        a(f"s_add_u32 {s(S_T0)}, {s(S_T0)}, {s(S_T1)}")
        a(f"v_add_u32 {v(T+6+r)}, {s(S_T0)}, {v(T+3)}")
        if r == 1:
            a(f"v_cmp_le_u32 vcc, 640, {v(T)}")
            a(f"v_mov_b32 {v(T+3)}, 0x40000000")
            a("s_nop 0")
            a(f"v_cndmask_b32 {v(T+6+r)}, {v(T+6+r)}, {v(T+3)}, vcc")
    a("s_waitcnt lgkmcnt(0)")
    for r in range(2):
        a(f"buffer_load_dwordx4 {v(V_XC+4*r,4)}, {v(T+6+r)}, {s(S_X,4)}, 0 offen")
    def issue(step):
        st = V_F[step % 3]
        a(f"s_cmp_lt_u32 {step}, {s(S_NS)}")
        a(f"s_cselect_b32 {s(S_KO)}, {step*1024}, 0x40000000")
        a(f"v_add_u32 {v(V_OFF)}, {s(S_KO)}, {v(V_L16)}")
        for i in range(4):
            a(f"buffer_load_dwordx4 {v(st+4*i,4)}, {v(V_OFF)}, {s(S_WS,4)}, {s(S_A+i)} offen")
        for i in range(5):
            a(f"buffer_load_dwordx4 {v(st+16+4*i,4)}, {v(V_OFF)}, {s(S_WS,4)}, {s(S_B+i)} offen")
    NS = 10
    for st in range(3): issue(st)
    stamp(a, 1)
    for step in range(NS):
        if step == 1: stamp(a, 2)
        ahead = min(NS-1, step+2) - step
        a(f"s_waitcnt vmcnt({9*ahead})")
        st = V_F[step % 3]
        for nt in range(5):
            for mt in range(4):
                d = v(V_ACC + (mt*5+nt)*4, 4)
                a(f"v_mfma_f32_16x16x32_bf16 {d}, {v(st+16+4*nt,4)}, {v(st+4*mt,4)}, {d}")
        if step + 3 < NS: issue(step+3)
    a.nop(8)
    stamp(a, 3)
    a(f"v_and_b32 {v(T+8-8)}, 15, {v(L)}") if False else None
    W = V_F[0]
    a(f"v_and_b32 {v(W)}, 15, {v(L)}")
    a(f"v_mul_u32_u24 {v(W)}, 320, {v(W)}")
    a(f"v_lshrrev_b32 {v(W+1)}, 4, {v(L)}")
    a(f"v_lshl_add_u32 {v(W)}, {v(W+1)}, 4, {v(W)}")
    a(f"s_mul_i32 {s(S_T0)}, {s(S_W)}, 20480")
    a(f"v_add_u32 {v(W)}, {s(S_T0)}, {v(W)}")
    for mt in range(4):
        for nt in range(5):
            a(f"ds_write_b128 {v(W)}, {v(V_ACC+(mt*5+nt)*4,4)} offset:{mt*16*320 + nt*64}")
    a("s_waitcnt lgkmcnt(0)")
    a("s_barrier")
    stamp(a, 4)
    for r in range(2):
        if r == 1:
            a(f"v_cmp_gt_u32 vcc, 128, v0")
            a("s_nop 0")
            a(f"s_and_saveexec_b64 {s(S_M,2)}, vcc")
            a("s_cbranch_execz L_k3_fin")
        ad = [V_ACC + 64 + i for i in range(8)]
        for w in range(8):
            a(f"v_add_u32 {v(ad[w])}, {w*20480}, {v(T+4+r)}")
        for w in range(8):
            a(f"ds_read_b128 {v(V_ACC+8*w,4)}, {v(ad[w])}")
            a(f"ds_read_b128 {v(V_ACC+8*w+4,4)}, {v(ad[w])} offset:16")
        a("s_waitcnt lgkmcnt(0)")
        S = V_ACC; F = V_ACC + 16
        for i in range(8): a(f"v_add_f32 {v(S+i)}, {v(S+i)}, {v(S+8+i)}")
        for w in range(3, 8):
            for i in range(8): a(f"v_add_f32 {v(F+i)}, {v(F+i)}, {v(V_ACC+8*w+i)}")
        E = V_F[0]
        for i in range(8): a(f"v_mul_f32 {v(E+i)}, {fhex(-LOG2E)}, {v(F+i)}")
        for i in range(8): a(f"v_exp_f32 {v(E+i)}, {v(E+i)}")
        a("s_nop 0")
        for i in range(8): a(f"v_add_f32 {v(E+i)}, 1.0, {v(E+i)}")
        for i in range(8): a(f"v_rcp_f32 {v(E+i)}, {v(E+i)}")
        a("s_nop 0")
        for i in range(8): a(f"v_mul_f32 {v(F+i)}, {v(F+i)}, {v(E+i)}")
        for i in range(8): a(f"v_mul_f32 {v(S+i)}, {v(S+i)}, {v(F+i)}")
        X = V_XC + 4*r
        a("s_waitcnt vmcnt(0)")
        for i in range(4):
            a(f"v_lshlrev_b32 {v(E+2*i)}, 16, {v(X+i)}")
            a(f"v_and_b32 {v(E+2*i+1)}, 0xffff0000, {v(X+i)}")
        for i in range(8): a(f"v_add_f32 {v(S+i)}, {v(S+i)}, {v(E+i)}")
        for i in range(4): a(f"v_cvt_pk_bf16_f32 {v(E+8+i+4*r)}, {v(S+2*i)}, {v(S+2*i+1)}")
        a(f"buffer_store_dwordx4 {v(E+8+4*r,4)}, {v(T+6+r)}, {s(S_OUT,4)}, 0 offen")
    a.label("L_k3_fin")
    if PROF:
        a("s_mov_b64 exec, -1")
        a("s_waitcnt vmcnt(0)")
        stamp(a, 5); stamp_cyc(a, 7)
        stamp_flush(a, 2, S_WS, S_W, V_ACC)
    if DBG: a("s_mov_b64 exec, -1")
    dbg_end(a, 2, V_ACC)
    a.label("L_k3_end")
    a("s_endpgm")
    return kd(name, NVGPR)
```
